```python
import torch

def _softmax(x, axis=-1):
    return torch.softmax(x, dim=axis)
def _gelu(x):
    return torch.nn.functional.gelu(x, approximate="tanh")
def _silu(x):
    return torch.nn.functional.silu(x)
def _sigmoid(x):
    return torch.sigmoid(x)
def _layernorm(x, axis=-1, eps=1e-5):
    m = x.mean(dim=axis, keepdim=True)
    v = x.var(dim=axis, keepdim=True, unbiased=False)
    return (x - m) / torch.sqrt(v + eps)
def _scatter_add(tgt, idx, src, axis=0):
    return tgt.clone().index_add_(axis, idx, src)
def _segment_sum(src, seg, n):
    out = torch.zeros((n,) + src.shape[1:], dtype=src.dtype)
    return out.index_add_(0, seg, src)
def _pad(x, pw):
    flat = tuple(v for pair in reversed(pw) for v in pair)
    return torch.nn.functional.pad(x, flat)

kernel_name = 'recurrent_scan__linear_attn_block__swiglu_ffn__prompt'

def setup_inputs():

    _w = (lambda a: (lambda t: t.to(torch.bfloat16) if t.is_floating_point() else t)(torch.as_tensor(a)))
    def _A_setup():
        B, S, D = 1, 2048, 1024
        return {
            "x": _w((lambda *s: torch.randn(*s, dtype=torch.bfloat16) * 0.05)(B, S, D)),
            "wqkv": _w((lambda *s: torch.randn(*s, dtype=torch.bfloat16) * 0.1)(D, 3 * D)),
            "wo": _w((lambda *s: torch.randn(*s, dtype=torch.bfloat16) * 0.05)(D, D)),
        }
    _A_in = _A_setup()

    def _B_setup():
        B, S, D, F = 1, 2048, 1024, 3584
        return {
            "x": _w((lambda *s: torch.randn(*s, dtype=torch.bfloat16) * 0.05)(B, S, D)),
            "w_gate": _w((lambda *s: torch.randn(*s, dtype=torch.bfloat16) * 0.05)(D, F)),
            "w_up": _w((lambda *s: torch.randn(*s, dtype=torch.bfloat16) * 0.05)(D, F)),
            "w_down": _w((lambda *s: torch.randn(*s, dtype=torch.bfloat16) * 0.05)(F, D)),
        }
    _B_in = _B_setup()

    return {
        "A_x": _A_in["x"],
        "A_wqkv": _A_in["wqkv"],
        "A_wo": _A_in["wo"],
        "B_x": _B_in["x"],
        "B_w_gate": _B_in["w_gate"],
        "B_w_up": _B_in["w_up"],
        "B_w_down": _B_in["w_down"],
    }

def reference(A_x, A_wqkv, A_wo, B_x, B_w_gate, B_w_up, B_w_down):
    def _A_ref(x, wqkv, wo):
        B, S, D = x.shape
        H = 32; Dh = D // H
        qkv = (lambda x, *d: x.permute(*d))((x @ wqkv).reshape(B, S, 3, H, Dh), 2, 0, 3, 1, 4)
        q, k, v = qkv[0], qkv[1], qkv[2]
        phi = lambda t: torch.where(t > 0, t + 1, torch.exp(t)) + 1e-6
        pq, pk = phi(q), phi(k)
        kv = torch.einsum("bhsd,bhse->bhde", pk, v)
        z = torch.einsum("bhsd->bhd", pk)
        num = torch.einsum("bhqd,bhde->bhqe", pq, kv)
        den = torch.einsum("bhqd,bhd->bhq", pq, z)[..., None] + 1e-6
        o = num / den
        return (lambda x, *d: x.permute(*d))(o, 0, 2, 1, 3).reshape(B, S, D) @ wo

    def _B_ref(x, w_gate, w_up, w_down):
        g = _silu(x @ w_gate)
        u = x @ w_up
        return (g * u) @ w_down

    x = A_x
    xn = _layernorm(x, axis=-1)
    s = _A_ref(xn, A_wqkv, A_wo)
    g = _silu(_B_ref(xn, B_w_gate, B_w_up, B_w_down))
    return x + s * g
```

```python
class Asm:
    def __init__(self):
        self.lines = []
    def __call__(self, s):
        for l in s.strip("\n").split("\n"):
            if not l.strip(): continue
            self.lines.append("    " + l.strip() if not l.strip().endswith(":") else l.strip())
    def label(self, l):
        self.lines.append(l + ":")
    def raw(self, s):
        self.lines.append(s)
    def text(self):
        return "\n".join(self.lines) + "\n"

HEADER = """; Kernarg layout for this problem (80 bytes, ptrs only, base s[0:1]):
"""

def kernel_begin(name):
    return f""".globl {name}
.p2align 8
.type {name},@function
{name}:
"""

def kernel_desc(name, vgpr, sgpr, accum):
    return f""".amdhsa_kernel {name}
  .amdhsa_next_free_vgpr {vgpr}
  .amdhsa_next_free_sgpr {sgpr}
  .amdhsa_accum_offset {accum}
  .amdhsa_group_segment_fixed_size 0
  .amdhsa_kernarg_size 80
  .amdhsa_user_sgpr_count 2
  .amdhsa_user_sgpr_kernarg_segment_ptr 1
  .amdhsa_system_sgpr_workgroup_id_x 1
  .amdhsa_float_denorm_mode_32 3
  .amdhsa_float_denorm_mode_16_64 3
.end_amdhsa_kernel
"""

def assemble_file(launches, kernels):
    s = HEADER
    for (n, g, b, l) in launches:
        s += f"; @launch kernel={n} grid=({g},1,1) block=({b},1,1) lds={l}\n"
    s += '.amdgcn_target "amdgcn-amd-amdhsa--gfx950"\n.text\n'
    for (n, body, v, sg, ac) in kernels:
        s += kernel_begin(n) + body
    s += '.section .rodata,"a"\n'
    for (n, body, v, sg, ac) in kernels:
        s += ".p2align 6\n" + kernel_desc(n, v, sg, ac)
    return s
```

```python
import sys
from asmlib import *

XF_OFF  = 0
PQ_OFF  = 4 << 20
KV_OFF  = 8 << 20
ZP_OFF  = 9 << 20
HF_OFF  = 16 << 20
WS_USED = 40 << 20
HF_TG2  = 144 * 2048
LOG2E   = 0x3fb8aa3b
NLOG2E  = 0xbfb8aa3b
EPS6    = 0x358637bd
EPS5    = 0x3727c5ac

def srd(a, d, lo, hi, nbytes):
    a(f"""
    s_mov_b32 s{d}, {lo}
    s_and_b32 s{d+1}, {hi}, 0xffff
    s_mov_b32 s{d+2}, {nbytes}
    s_mov_b32 s{d+3}, 0x00020000
    """)

def code_warm(a, name, vtmp, vdst, spair):
    a(f"""
    s_getpc_b64 s[{spair}:{spair+1}]
    v_lshlrev_b32 v{vtmp}, 7, v0
    v_min_u32 v{vtmp}, {name}_codeend-{name}-64, v{vtmp}
    global_load_dword v{vdst}, v{vtmp}, s[{spair}:{spair+1}]
    """)

def gen_ln(name, stamps=False):
    a = Asm()
    a(f"""
    s_cmp_ge_u32 s2, 256
    s_cbranch_scc1 {name}_end
    s_load_dwordx2 s[4:5], s[0:1], 0
    s_load_dwordx2 s[6:7], s[0:1], 72
    {"s_memrealtime s[20:21]" if stamps else ""}
    v_and_b32 v1, 7, v0
    v_bfe_u32 v2, v0, 3, 3
    v_lshrrev_b32 v3, 6, v0
    v_lshlrev_b32 v4, 11, v1
    v_lshl_add_u32 v4, v2, 4, v4
    v_lshl_add_u32 v4, v3, 9, v4
    s_lshl_b32 s3, s2, 14
    v_lshlrev_b32 v5, 15, v3
    v_lshrrev_b32 v6, 2, v2
    v_lshl_add_u32 v5, v6, 12, v5
    v_and_b32 v6, 3, v2
    v_lshl_add_u32 v5, v6, 8, v5
    v_lshl_add_u32 v5, v1, 4, v5
    v_lshlrev_b32 v7, 6, v1
    v_bfe_u32 v6, v0, 4, 2
    v_lshl_add_u32 v6, v6, 2, v7
    v_lshl_add_u32 v6, v3, 4, v6
    s_lshr_b32 s16, s2, 3
    s_lshl_b32 s16, s16, 17
    s_bfe_u32 s17, s2, 0x20001
    s_lshl_b32 s17, s17, 10
    s_add_u32 s16, s16, s17
    s_and_b32 s17, s2, 1
    s_lshl_b32 s17, s17, 7
    s_add_u32 s16, s16, s17
    s_add_u32 s17, s16, 8192
    s_add_u32 s18, s16, 16384
    s_add_u32 s19, s16, 24576
    s_waitcnt lgkmcnt(0)
    """)
    srd(a, 8, "s4", "s5", 2048*1024*2)
    srd(a, 12, "s6", "s7", 4 << 20)
    for i in range(4):
        a(f"buffer_load_dwordx4 v[{8+4*i}:{11+4*i}], v4, s[8:11], s3 offen offset:{128*i}")
    for i in range(4):
        a(f"s_waitcnt vmcnt({3-i})")
        for d in range(4):
            s = 8 + 4*i + d
            a(f"v_lshlrev_b32 v{32+2*(4*i+d)}, 16, v{s}")
            a(f"v_and_b32 v{33+2*(4*i+d)}, 0xffff0000, v{s}")
    def tree(src, tmp):
        for i in range(8):
            a(f"v_pk_add_f32 v[{tmp+2*i}:{tmp+2*i+1}], v[{src+4*i}:{src+4*i+1}], v[{src+4*i+2}:{src+4*i+3}]")
        for n in (4, 2, 1):
            for i in range(n):
                a(f"v_pk_add_f32 v[{tmp+2*i}:{tmp+2*i+1}], v[{tmp+2*i}:{tmp+2*i+1}], v[{tmp+2*(i+n)}:{tmp+2*(i+n)+1}]")
        a(f"v_add_f32 v{tmp}, v{tmp}, v{tmp+1}")
    def wg_reduce(tmp, ldsoff):
        a(f"""
        s_nop 1
        v_add_f32_dpp v{tmp}, v{tmp}, v{tmp} row_ror:8 row_mask:0xf bank_mask:0xf
        ds_write_b32 v6, v{tmp} offset:{ldsoff}
        s_waitcnt lgkmcnt(0)
        s_barrier
        """)
        for i in range(4):
            a(f"ds_read_b128 v[{tmp+4*i}:{tmp+4*i+3}], v7 offset:{ldsoff+16*i}")
        a("s_waitcnt lgkmcnt(0)")
        for n in (4, 2, 1):
            for i in range(n):
                a(f"v_pk_add_f32 v[{tmp+2*i}:{tmp+2*i+1}], v[{tmp+2*i}:{tmp+2*i+1}], v[{tmp+2*(i+n)}:{tmp+2*(i+n)+1}]")
        a(f"v_add_f32 v{tmp}, v{tmp}, v{tmp+1}")
    tree(32, 64)
    wg_reduce(64, 0)
    a("""
    v_mul_f32 v24, 0x3a800000, v64
    v_mov_b32 v25, v24
    """)
    for i in range(16):
        a(f"v_pk_add_f32 v[{80+2*i}:{81+2*i}], v[{32+2*i}:{33+2*i}], v[24:25] neg_lo:[0,1] neg_hi:[0,1]")
    for i in range(16):
        a(f"v_pk_mul_f32 v[{80+2*i}:{81+2*i}], v[{80+2*i}:{81+2*i}], v[{80+2*i}:{81+2*i}]")
    tree(80, 64)
    wg_reduce(64, 512)
    a(f"""
    v_mul_f32 v26, 0x3a800000, v64       ; var
    v_cvt_pk_bf16_f32 v28, v24, v26
    v_lshlrev_b32 v24, 16, v28           ; m_bf
    v_and_b32 v26, 0xffff0000, v28       ; v_bf
    v_add_f32 v26, {EPS5:#x}, v26
    v_cvt_pk_bf16_f32 v26, v26, v26
    v_and_b32 v26, 0xffff0000, v26
    v_sqrt_f32 v26, v26
    s_nop 0
    v_cvt_pk_bf16_f32 v26, v26, v26
    v_and_b32 v26, 0xffff0000, v26
    v_rcp_f32 v26, v26
    v_mov_b32 v25, v24
    s_nop 0
    v_mov_b32 v27, v26
    """)
    for i in range(16):
        a(f"v_pk_add_f32 v[{32+2*i}:{33+2*i}], v[{32+2*i}:{33+2*i}], v[24:25] neg_lo:[0,1] neg_hi:[0,1]")
    for i in range(16):
        a(f"v_cvt_pk_bf16_f32 v{8+i}, v{32+2*i}, v{33+2*i}")
    for i in range(16):
        a(f"v_lshlrev_b32 v{32+2*i}, 16, v{8+i}")
        a(f"v_and_b32 v{33+2*i}, 0xffff0000, v{8+i}")
    for i in range(16):
        a(f"v_pk_mul_f32 v[{32+2*i}:{33+2*i}], v[{32+2*i}:{33+2*i}], v[26:27]")
    for i in range(4):
        for d in range(4):
            k = 4*i + d
            a(f"v_cvt_pk_bf16_f32 v{8+k}, v{32+2*k}, v{33+2*k}")
        a(f"buffer_store_dwordx4 v[{8+4*i}:{11+4*i}], v5, s[12:15], s{16+i} offen")
    if stamps:
        a(f"""
        s_waitcnt vmcnt(0)
        s_memrealtime s[22:23]
        s_waitcnt lgkmcnt(0)
        s_mov_b32 s14, {WS_USED}
        v_mov_b32 v4, s20
        v_mov_b32 v5, s22
        v_lshlrev_b32 v8, 4, v0
        s_lshl_b32 s3, s2, 12
        s_add_u32 s3, s3, {38<<20}
        buffer_store_dwordx2 v[4:5], v8, s[12:15], s3 offen
        """)
    a.label(f"{name}_end")
    a("s_endpgm")
    return a.text(), 112, 24, 112

def gen_gemm1(name, XR=4, R=5, stamps=False):
    a = Asm()
    SLOT = 20480
    NV = 58
    VB = 24
    A_W = 0
    A_X = 40
    A_ACC = A_X + 16 * XR
    def accr(ct, tt):
        L = ct * 4 + tt
        return ("v", VB + 4 * L) if L < NV else ("a", A_ACC + 4 * (L - NV))
    def acc(ct, tt):
        f, r = accr(ct, tt)
        return f"{f}[{r}:{r+3}]"
    def wfrag(c): return A_W + 4 * (c % 10)
    def xfrag(u, tt): return A_X + 16 * (u % XR) + 4 * tt
    a(f"""
    s_cmp_ge_u32 s2, 256
    s_cbranch_scc1 {name}_end
    s_load_dwordx2 s[4:5], s[0:1], 8
    s_load_dwordx4 s[52:55], s[0:1], 32
    s_load_dwordx2 s[10:11], s[0:1], 72
    """)
    if stamps: a("s_memrealtime s[76:77]")
    code_warm(a, name, 17, 23, 56)
    a(f"""
    v_and_b32 v1, 63, v0
    v_lshrrev_b32 v17, 6, v0
    v_lshlrev_b32 v16, 4, v1
    v_readfirstlane_b32 s14, v17
    s_and_b32 s12, s2, 7
    s_lshl_b32 s12, s12, 2
    s_bfe_u32 s13, s2, 0x20003
    s_add_u32 s12, s12, s13          ; j
    s_lshr_b32 s13, s2, 5            ; m
    s_mul_i32 s15, s14, 5            ; 5w
    s_movk_i32 s74, 4682
    """)
    for i in range(5):
        a(f"""
        s_add_u32 s45, s15, {i}          ; n
        s_cmp_lt_u32 s45, 13
        s_cselect_b32 s46, 6, 13
        s_cmp_lt_u32 s45, 6
        s_cselect_b32 s46, 0, s46
        s_cselect_b32 s47, 5462, s74
        s_cselect_b32 s48, 12, 14
        v_mov_b32 v21, s47
        s_cselect_b32 s50, 2048, 64
        s_cselect_b32 s51, 2, 0
        s_cselect_b32 s47, 64, 224
        s_lshl_b32 s49, s48, 9
        s_sub_u32 s45, s45, s46
        s_lshl_b32 s45, s45, 6
        s_mul_i32 s47, s47, s12
        v_add_u32 v17, s45, v1
        v_mul_u32_u24 v18, v21, v17
        v_lshrrev_b32 v18, 16, v18
        v_mul_u32_u24 v19, s48, v18
        v_sub_u32 v17, v17, v19
        v_lshrrev_b32 v19, 1, v18
        v_and_b32 v19, s51, v19
        v_xor_b32 v17, v17, v19
        v_and_b32 v19, 3, v18
        v_bfe_u32 v20, v18, 4, 1
        v_lshl_or_b32 v19, v20, 2, v19
        v_bfe_u32 v20, v18, 2, 2
        v_lshl_or_b32 v19, v20, 3, v19
        v_mul_u32_u24 v19, s49, v19
        v_lshrrev_b32 v20, 2, v17
        v_mul_u32_u24 v20, s50, v20
        v_and_b32 v17, 3, v17
        v_lshl_add_u32 v20, v17, 4, v20
        v_add3_u32 v{2+i}, v19, v20, s47
        """)
    a(f"""
    v_bfe_u32 v17, v1, 2, 4
    v_and_b32 v18, 3, v1
    v_lshlrev_b32 v18, 3, v18          ; (i&3)*8
    v_mul_u32_u24 v9, 224, v17
    v_add_u32 v9, v9, v18
    v_mul_u32_u24 v7, 192, v17
    v_add_u32 v7, v7, v18
    v_bfe_u32 v19, v1, 4, 1
    v_lshlrev_b32 v19, 5, v19          ; (Q&1)*32
    v_sub_u32 v8, v7, v19
    v_add_u32 v7, v7, v19
    v_mov_b32 v10, v7
    v_mov_b32 v11, v8
    v_mov_b32 v12, v9
    s_waitcnt lgkmcnt(0)
    """)
    QB = 1024 * 3072 * 2; GB = 1024 * 3584 * 2
    def sel_srd(d, w_gate_from, w_up_from):
        a(f"""
        s_cmp_lt_u32 s14, {w_up_from}
        s_cselect_b32 s{d}, s52, s54
        s_cselect_b32 s{d+1}, s53, s55
        s_cmp_lt_u32 s14, {w_gate_from}
        s_cselect_b32 s{d}, s4, s{d}
        s_cselect_b32 s{d+1}, s5, s{d+1}
        s_cselect_b32 s{d+2}, {QB}, s58
        s_and_b32 s{d+1}, s{d+1}, 0xffff
        s_mov_b32 s{d+3}, 0x00020000
        """)
    a(f"s_mov_b32 s58, {GB}")
    sel_srd(16, 2, 3)
    sel_srd(20, 1, 3)
    sel_srd(24, 1, 2)
    a(f"""
    s_mov_b32 s59, {32*7168}
    s_cmp_lt_u32 s14, 2
    s_cselect_b32 s38, {32*6144}, s59
    s_cmp_lt_u32 s14, 1
    s_cselect_b32 s39, {32*6144}, s59
    s_mov_b32 s36, 0
    s_mov_b32 s37, 0
    s_lshl_b32 s45, s13, 2
    s_add_u32 s45, s45, s14
    s_lshl_b32 s45, s45, 17
    s_add_u32 s28, s10, s45
    s_addc_u32 s29, s11, 0
    s_and_b32 s29, s29, 0xffff
    s_mov_b32 s30, 131072
    s_mov_b32 s31, 0x00020000
    s_mov_b32 s40, 0
    s_mul_i32 s60, s14, 5120           ; w*5120
    """)
    srd(a, 32, "s10", "s11", WS_USED)
    srds = [16, 20, 20, 24, 24]; offs = [36, 37, 37, 37, 37]
    def dma(i):
        return f"buffer_load_dwordx4 v{2+i}, s[{srds[i]}:{srds[i]+3}], s{offs[i]} offen lds"
    def xload(u, tt):
        r = xfrag(u, tt)
        return f"buffer_load_dwordx4 a[{r}:{r+3}], v16, s[28:31], s40 offen offset:{tt*1024}"
    def pro_dma(stage):
        for i in range(5):
            a(f"s_add_u32 m0, s60, {stage*SLOT + i*1024}")
            a("s_nop 0")
            a(dma(i))
        a("s_add_u32 s36, s36, s38\n s_add_u32 s37, s37, s39")
    def pro_x(stage):
        for tt in range(4): a(xload(stage, tt))
        a("s_add_u32 s40, s40, 4096")
    order = []
    for u in range(-max(XR, R), 0):
        if u + XR - 1 >= 0: order.append(("x", u + XR - 1))
        if u + R - 1 >= 0: order.append(("d", u + R - 1))
    for kind, st in order:
        (pro_x if kind == "x" else pro_dma)(st)
    last = max(order.index(("x", 0)), order.index(("d", 0)))
    n_after = sum(4 if k == "x" else 5 for k, _ in order[last+1:])
    for L in range(NV * 4): a(f"v_mov_b32 v{VB+L}, 0")
    for L in range((80 - NV) * 4): a(f"v_accvgpr_write_b32 a{A_ACC+L}, 0")
    a(f"""
    s_mov_b32 s41, {(R-1)*SLOT}
    s_mov_b32 s42, 0
    s_mov_b32 s43, {SLOT}
    s_mov_b32 s44, {32 // XR}
    s_waitcnt vmcnt({n_after})
    s_barrier
    """)
    def trreads(c, bset):
        b = 10 + 3 * bset
        r = wfrag(c)
        if c < 6:
            base = b + (c & 1); off = c * 32; step = 16 * 192
        else:
            base = b + 2
            u = 1 if c >= 13 else 0
            t = c - (13 if u else 6)
            off = 6144 + u * 7168 + t * 32; step = 16 * 224
        return [f"ds_read_b64_tr_b16 a[{r}:{r+1}], v{base} offset:{off}",
                f"ds_read_b64_tr_b16 a[{r+2}:{r+3}], v{base} offset:{off+step}"]
    for c in range(9):
        for ins in trreads(c, 0): a(ins)
    a("s_waitcnt lgkmcnt(8)")
    if stamps:
        a("s_memtime s[62:63]\n s_memrealtime s[64:65]")
    if R <= XR: NB = 9 * (R - 3) + 4
    else: NB = 9 * (XR - 3) + 9
    a.raw(".p2align 6")
    a.label(f"{name}_loop")
    for u in range(XR):
        bs = u & 1
        gaps = {}
        def put(c, g, ins): gaps.setdefault((c, g), []).append(ins)
        for c in range(20):
            cn = c + 9
            rd = trreads(cn, bs) if cn < 20 else trreads(cn - 20, bs ^ 1)
            put(c, 0, rd[0]); put(c, 1, rd[1])
        for tt in range(4): put(tt, 2, xload(u - 1, tt))
        put(4, 2, "s_add_u32 s40, s40, 4096")
        nb = 10 + 3 * (bs ^ 1)
        put(5, 2, f"v_add_u32 v{nb}, s43, v7")
        put(5, 3, f"v_add_u32 v{nb+1}, s43, v8")
        put(6, 2, f"v_add_u32 v{nb+2}, s43, v9")
        put(6, 3, "s_add_u32 s61, s41, s60")
        for c in (3, 7, 11, 15, 19): put(c, 3, "s_waitcnt lgkmcnt(8)")
        put(10, 2, f"s_waitcnt vmcnt({NB})")
        put(10, 3, "s_barrier")
        dpos = [12, 13, 14, 16, 17]
        for i in range(5):
            put(dpos[i], 2, f"s_add_u32 m0, s61, {i*1024}")
            put(dpos[i], 3, dma(i))
        put(18, 2, "s_add_u32 s36, s36, s38")
        put(18, 3, "s_add_u32 s37, s37, s39")
        put(8, 2, "s_mov_b32 s41, s42")
        put(8, 3, "s_mov_b32 s42, s43")
        put(9, 2, f"s_add_u32 s43, s43, {SLOT}")
        put(9, 3, f"s_cmp_ge_u32 s43, {R*SLOT}")
        put(9, 3, f"s_cselect_b32 s43, 0, s43")
        if u == XR - 1:
            put(19, 2, "s_sub_u32 s44, s44, 1")
            put(19, 2, "s_cmp_lg_u32 s44, 0")
        for c in range(20):
            tts = [0, 1, 2, 3] if c % 2 == 0 else [3, 2, 1, 0]
            w = wfrag(c)
            for g, tt in enumerate(tts):
                x = xfrag(u, tt)
                A, B = (f"a[{w}:{w+3}]", f"a[{x}:{x+3}]")
                if 2 <= c < 6: A, B = B, A
                a(f"v_mfma_f32_16x16x32_bf16 {acc(c,tt)}, {A}, {B}, {acc(c,tt)}")
                for ins in gaps.get((c, g), []): a(ins)
    a(f"s_cbranch_scc1 {name}_loop")
    if stamps:
        a("s_memtime s[66:67]\n s_memrealtime s[68:69]")
    a(f"""
    s_mov_b32 s50, {LOG2E:#x}
    s_mov_b32 s51, {LOG2E:#x}
    s_mov_b32 s48, {NLOG2E:#x}
    s_mov_b32 s49, {NLOG2E:#x}
    s_mov_b32 s46, {EPS6:#x}
    s_mov_b32 s47, {EPS6:#x}
    v_mov_b32 v2, 0x3f803f80
    v_mov_b32 v3, 0x3f803f80
    v_mov_b32 v4, 0x3f803f80
    v_mov_b32 v5, 0x3f803f80
    s_waitcnt vmcnt(0) lgkmcnt(0)
    s_barrier
    """)
    def phi_tile(ct, tt):
        f, r = accr(ct, tt); assert f == "v"
        a(f"v_pk_mul_f32 v[18:19], v[{r}:{r+1}], s[50:51]")
        a(f"v_pk_mul_f32 v[20:21], v[{r+2}:{r+3}], s[50:51]")
        for k in range(4): a(f"v_exp_f32_e64 v{18+k}, v{18+k} clamp")
        for k in range(4): a(f"v_max_f32 v{r+k}, 0, v{r+k}")
        a(f"v_pk_add_f32 v[{r}:{r+1}], v[{r}:{r+1}], v[18:19]")
        a(f"v_pk_add_f32 v[{r+2}:{r+3}], v[{r+2}:{r+3}], v[20:21]")
        a(f"v_pk_add_f32 v[{r}:{r+1}], v[{r}:{r+1}], s[46:47]")
        a(f"v_pk_add_f32 v[{r+2}:{r+3}], v[{r+2}:{r+3}], s[46:47]")
    def pack_pair(r0, r1):
        a(f"v_cvt_pk_bf16_f32 v{r0}, v{r0}, v{r0+1}")
        a(f"v_cvt_pk_bf16_f32 v{r0+1}, v{r0+2}, v{r0+3}")
        a(f"v_cvt_pk_bf16_f32 v{r0+2}, v{r1}, v{r1+1}")
        a(f"v_cvt_pk_bf16_f32 v{r0+3}, v{r1+2}, v{r1+3}")
    for ca in (2, 3):
        for tt in range(4): phi_tile(ca, tt)
    for ca in (2, 3, 4, 5):
        for p in range(2):
            pack_pair(accr(ca, 2*p)[1], accr(ca, 2*p+1)[1])
    free = [accr(ca, tt)[1] for ca in (2, 3, 4, 5) for tt in (1, 3)]
    D = {}
    idx = 0
    for aa in range(2):
        for bb in range(2):
            D[(aa, bb)] = free[idx]; idx += 1
    for aa in range(2):
        D[(aa, 'z')] = free[idx]; idx += 1
    a("s_nop 1")
    for p in range(2):
        for aa in range(2):
            pk = accr(2 + aa, 2*p)[1]
            for bb in (0, 1, 'z'):
                vb = accr(4 + bb, 2*p)[1] if bb != 'z' else 2
                d = D[(aa, bb)]
                c = "0" if p == 0 else f"v[{d}:{d+3}]"
                a(f"v_mfma_f32_16x16x32_bf16 v[{d}:{d+3}], v[{pk}:{pk+3}], v[{vb}:{vb+3}], {c}")
    a(f"""
    s_lshl_b32 s45, s13, 5
    s_add_u32 s45, s45, s12
    s_lshl_b32 s45, s45, 2
    s_add_u32 s45, s45, s14
    s_lshl_b32 s45, s45, 12
    s_add_u32 s45, s45, {PQ_OFF}
    s_mul_i32 s56, s14, 6144
    v_add_u32 v17, s56, v16
    """)
    for tt in range(4):
        phi_tile(0, tt); phi_tile(1, tt)
        r0 = accr(0, tt)[1]; r1 = accr(1, tt)[1]
        pack_pair(r0, r1)
        a(f"buffer_store_dwordx4 v[{r0}:{r0+3}], v16, s[32:35], s45 offen offset:{tt*1024}")
        if tt == 0:
            for ti, key in enumerate([(0,0),(0,1),(1,0),(1,1),(0,'z'),(1,'z')]):
                d = D[key]
                a(f"ds_write_b128 v17, v[{d}:{d+3}] offset:{ti*1024}")
    a("s_waitcnt lgkmcnt(0)\n s_barrier")
    t0 = accr(2, 0)[1]
    a(f"""
    s_lshl_b32 s56, s14, 10
    v_add_u32 v17, s56, v16
    s_and_b32 s57, s14, 1
    s_lshl_b32 s56, s57, 10
    v_add_u32 v22, s56, v16
    """)
    for w in range(4):
        a(f"ds_read_b128 v[{t0+4*w}:{t0+4*w+3}], v17 offset:{w*6144}")
    for w in range(4):
        a(f"ds_read_b128 v[{t0+16+4*w}:{t0+16+4*w+3}], v22 offset:{w*6144+4096}")
    a(f"""
    s_lshl_b32 s56, s13, 3
    s_lshl_b32 s58, s14, 1
    s_add_u32 s56, s56, s58
    s_mul_i32 s56, s56, {HF_TG2}
    s_mul_i32 s58, s12, 7
    s_lshr_b32 s58, s58, 1
    s_lshl_b32 s58, s58, 11
    s_add_u32 s56, s56, s58
    s_add_u32 s56, s56, {HF_OFF}       ; h base
    s_lshl_b32 s58, s12, 3
    s_add_u32 s58, s58, s13
    s_lshl_b32 s59, s58, 12
    s_add_u32 s59, s59, {KV_OFF}
    s_lshl_b32 s58, s58, 7
    s_lshl_b32 s57, s57, 6
    s_add_u32 s58, s58, s57
    s_add_u32 s58, s58, {ZP_OFF}
    v_and_b32 v22, 48, v1              ; Q*16
    s_waitcnt lgkmcnt(0)
    """)
    for base in (t0, t0 + 16):
        a(f"v_pk_add_f32 v[{base}:{base+1}], v[{base}:{base+1}], v[{base+4}:{base+5}]")
        a(f"v_pk_add_f32 v[{base+2}:{base+3}], v[{base+2}:{base+3}], v[{base+6}:{base+7}]")
        a(f"v_pk_add_f32 v[{base+8}:{base+9}], v[{base+8}:{base+9}], v[{base+12}:{base+13}]")
        a(f"v_pk_add_f32 v[{base+10}:{base+11}], v[{base+10}:{base+11}], v[{base+14}:{base+15}]")
        a(f"v_pk_add_f32 v[{base}:{base+1}], v[{base}:{base+1}], v[{base+8}:{base+9}]")
        a(f"v_pk_add_f32 v[{base+2}:{base+3}], v[{base+2}:{base+3}], v[{base+10}:{base+11}]")
    a(f"buffer_store_dwordx4 v[{t0}:{t0+3}], v17, s[32:35], s59 offen")
    a(f"buffer_store_dwordx4 v[{t0+16}:{t0+19}], v22, s[32:35], s58 offen")
    hb0 = accr(4, 0)[1]
    a("v_add_u32 v17, 8, v16")
    a("s_bitcmp1_b32 s12, 0")
    a("s_cselect_b32 s57, 1, 0")
    for tt in range(4):
        hb = hb0 + 16 * (tt & 1)
        for i in range(7):
            fg, g = accr(6 + i, tt); assert fg == "v"
            fu, u = accr(13 + i, tt)
            if fu == "a":
                for k in range(4): a(f"v_accvgpr_read_b32 v{6+k}, a{u+k}")
                u = 6
            a(f"v_pk_mul_f32 v[18:19], v[{g}:{g+1}], s[48:49]")
            a(f"v_pk_mul_f32 v[20:21], v[{g+2}:{g+3}], s[48:49]")
            for k in range(4): a(f"v_exp_f32 v{18+k}, v{18+k}")
            a(f"v_pk_mul_f32 v[{g}:{g+1}], v[{g}:{g+1}], v[{u}:{u+1}]")
            a(f"v_pk_mul_f32 v[{g+2}:{g+3}], v[{g+2}:{g+3}], v[{u+2}:{u+3}]")
            a(f"v_pk_add_f32 v[18:19], v[18:19], 1.0 op_sel_hi:[1,0]")
            a(f"v_pk_add_f32 v[20:21], v[20:21], 1.0 op_sel_hi:[1,0]")
            for k in range(4): a(f"v_rcp_f32 v{18+k}, v{18+k}")
            a("s_nop 0")
            a(f"v_pk_mul_f32 v[{g}:{g+1}], v[{g}:{g+1}], v[18:19]")
            a(f"v_pk_mul_f32 v[{g+2}:{g+3}], v[{g+2}:{g+3}], v[20:21]")
            a(f"v_cvt_pk_bf16_f32 v{hb+2*i}, v{g}, v{g+1}")
            a(f"v_cvt_pk_bf16_f32 v{hb+2*i+1}, v{g+2}, v{g+3}")
        off = (tt >> 1) * HF_TG2 + (tt & 1) * 1024
        a(f"s_add_u32 s58, s56, {off}")
        a(f"s_add_u32 s59, s56, {off + 4096}")
        a(f"s_cmp_eq_u32 s57, 0")
        a(f"s_cbranch_scc0 {name}_odd{tt}")
        a(f"buffer_store_dwordx4 v[{hb}:{hb+3}], v16, s[32:35], s58 offen")
        a(f"buffer_store_dwordx4 v[{hb+4}:{hb+7}], v16, s[32:35], s58 offen offset:2048")
        a(f"buffer_store_dwordx4 v[{hb+8}:{hb+11}], v16, s[32:35], s59 offen")
        a(f"buffer_store_dwordx2 v[{hb+12}:{hb+13}], v16, s[32:35], s59 offen offset:2048")
        a(f"s_branch {name}_join{tt}")
        a.label(f"{name}_odd{tt}")
        a(f"buffer_store_dwordx2 v[{hb}:{hb+1}], v17, s[32:35], s58 offen")
        a(f"buffer_store_dwordx4 v[{hb+2}:{hb+5}], v16, s[32:35], s58 offen offset:2048")
        a(f"buffer_store_dwordx4 v[{hb+6}:{hb+9}], v16, s[32:35], s59 offen")
        a(f"buffer_store_dwordx4 v[{hb+10}:{hb+13}], v16, s[32:35], s59 offen offset:2048")
        a.label(f"{name}_join{tt}")
    if stamps:
        a(f"""
        s_waitcnt vmcnt(0)
        s_memtime s[70:71]
        s_memrealtime s[72:73]
        s_waitcnt lgkmcnt(0)
        s_sub_u32 s66, s66, s62
        s_sub_u32 s70, s70, s62
        v_mov_b32 v4, s76
        v_mov_b32 v5, s64
        v_mov_b32 v6, s68
        v_mov_b32 v7, s72
        v_mov_b32 v10, s66
        v_mov_b32 v11, s70
        v_lshlrev_b32 v8, 4, v0
        s_lshl_b32 s45, s2, 12
        s_add_u32 s45, s45, {36<<20}
        buffer_store_dwordx4 v[4:7], v8, s[32:35], s45 offen
        s_add_u32 s45, s45, {1<<20}
        buffer_store_dwordx2 v[10:11], v8, s[32:35], s45 offen
        """)
    a.label(f"{name}_end")
    a("s_endpgm")
    a.label(f"{name}_codeend")
    nv = 256 + A_ACC + (80 - NV) * 4
    return a.text(), nv, 80, 256, max(R * SLOT, 24576)


def gen_gemm2(name, R=5, stamps=False):
    a = Asm()
    SLOT = 16384
    HR = 16
    V_X = 24
    V_W = 40
    V_ACC = 72
    V_SAV = 104
    V_T = 136
    def hreg(kk, t2): return 8 * (kk % HR) + 4 * t2
    def wreg(st, nt): return V_W + 16 * st + 4 * nt
    def areg(nt, t2): return V_ACC + 8 * nt + 4 * t2
    a(f"""
    s_cmp_ge_u32 s2, 256
    s_cbranch_scc1 {name}_end
    s_load_dwordx2 s[4:5], s[0:1], 0       ; x
    s_load_dwordx2 s[6:7], s[0:1], 16      ; wo
    s_load_dwordx4 s[8:11], s[0:1], 48
    s_load_dwordx4 s[52:55], s[0:1], 64
    """)
    if stamps: a("s_memrealtime s[76:77]")
    code_warm(a, name, 20, 23, 56)
    a(f"""
    v_and_b32 v1, 63, v0
    v_lshrrev_b32 v20, 6, v0
    v_lshlrev_b32 v2, 4, v1
    v_readfirstlane_b32 s14, v20           ; w
    s_bfe_u32 s12, s2, 0x20001
    s_lshl_b32 s12, s12, 2
    s_bfe_u32 s13, s2, 0x20003
    s_add_u32 s12, s12, s13                ; tb
    s_and_b32 s13, s2, 1
    s_lshl_b32 s13, s13, 3
    s_lshr_b32 s15, s2, 5
    s_add_u32 s13, s13, s15                ; nb
    v_lshrrev_b32 v20, 3, v1
    v_bfe_u32 v21, v1, 1, 2
    v_bfe_u32 v22, v1, 4, 2
    v_xor_b32 v21, v21, v22
    v_lshlrev_b32 v3, 11, v20
    v_lshl_add_u32 v3, v21, 5, v3
    v_and_b32 v21, 1, v1
    v_lshl_add_u32 v3, v21, 4, v3
    s_lshl_b32 s45, s13, 7
    s_lshl_b32 s46, s14, 16
    s_add_u32 s45, s45, s46
    v_add_u32 v3, s45, v3
    v_add_u32 v4, 16384, v3
    v_add_u32 v5, 32768, v3
    v_add_u32 v6, 49152, v3
    v_lshrrev_b32 v20, 2, v1
    v_lshlrev_b32 v20, 7, v20
    v_and_b32 v21, 3, v1
    v_lshl_add_u32 v20, v21, 3, v20
    v_bfe_u32 v21, v1, 3, 2
    """)
    for nt in range(4):
        a(f"v_xor_b32 v22, {nt}, v21")
        a(f"v_lshl_add_u32 v{7+nt}, v22, 5, v20")
        a(f"v_mov_b32 v{11+nt}, v{7+nt}")
    a(f"""
    s_and_b32 s47, s2, 31                  ; h
    s_lshr_b32 s48, s2, 5                  ; m
    s_lshl_b32 s49, s47, 15                ; h*8*4096
    s_lshl_b32 s50, s14, 10
    s_add_u32 s49, s49, s50
    s_add_u32 s49, s49, {KV_OFF}
    s_lshl_b32 s50, s47, 10                ; h*8*128
    s_and_b32 s51, s14, 1
    s_lshl_b32 s51, s51, 6
    s_add_u32 s50, s50, s51
    s_add_u32 s50, s50, {ZP_OFF}           ; z base (+m'*128)
    s_lshl_b32 s51, s2, 2                  ; (m*32+h)*4 + w
    s_add_u32 s51, s51, s14
    s_lshl_b32 s51, s51, 12
    s_add_u32 s51, s51, {PQ_OFF}
    v_and_b32 v22, 48, v1                  ; Q*16
    s_waitcnt lgkmcnt(0)
    """)
    srd(a, 32, "s54", "s55", WS_USED)
    srd(a, 16, "s8", "s9", 3584*1024*2)
    srd(a, 20, "s4", "s5", 2048*1024*2)
    srd(a, 24, "s10", "s11", 2048*1024*2)
    a("s_and_b32 s75, s7, 0xffff")
    a(f"""
    s_lshl_b32 s45, s12, 2
    s_add_u32 s45, s45, s14
    s_mul_i32 s45, s45, {HF_TG2}
    s_add_u32 s45, s45, {HF_OFF}
    s_add_u32 s28, s54, s45
    s_addc_u32 s29, s55, 0
    s_and_b32 s29, s29, 0xffff
    s_mov_b32 s30, {HF_TG2}
    s_mov_b32 s31, 0x00020000
    """)
    T = V_T
    for p in range(8):
        a(f"buffer_load_dwordx4 v[{T+4*p}:{T+4*p+3}], v2, s[32:35], s49 offen")
        if p < 7: a("s_add_u32 s49, s49, 4096")
    for p in range(8):
        a(f"buffer_load_dwordx4 v[{T+32+4*p}:{T+32+4*p+3}], v22, s[32:35], s50 offen offset:{p*128}")
    for i in range(4):
        a(f"buffer_load_dwordx4 v[{T+64+4*i}:{T+64+4*i+3}], v2, s[32:35], s51 offen offset:{i*1024}")
    a(f"""
    s_mov_b32 s36, 0                       ; W soffset
    s_lshl_b32 s60, s14, 12                ; w*4096
    s_mov_b32 s40, 0                       ; h soffset
    """)
    def dma(i): return f"buffer_load_dwordx4 v{3+i}, s[16:19], s36 offen lds"
    def hload(kk, t2):
        r = hreg(kk, t2)
        return f"buffer_load_dwordx4 a[{r}:{r+3}], v2, s[28:31], s40 offen offset:{t2*1024} sc1"
    for st in range(R - 1):
        for i in range(4):
            a(f"s_add_u32 m0, s60, {st*SLOT + i*1024}")
            a("s_nop 0")
            a(dma(i))
        a(f"s_add_u32 s36, s36, {128*2048}")
    ndma = 4 * (R - 1)
    a(f"s_waitcnt vmcnt({ndma + 4})")
    for base in (T, T + 32):
        for n in (4, 2, 1):
            for i in range(n):
                for hh in range(2):
                    d = base + 4 * i + 2 * hh; s2_ = base + 4 * (i + n) + 2 * hh
                    a(f"v_pk_add_f32 v[{d}:{d+1}], v[{d}:{d+1}], v[{s2_}:{s2_+1}]")
        a(f"v_cvt_pk_bf16_f32 v{base}, v{base}, v{base+1}")
        a(f"v_cvt_pk_bf16_f32 v{base+1}, v{base+2}, v{base+3}")
    SCR = R * SLOT
    a(f"""
    s_and_b32 s45, s14, 1
    s_lshr_b32 s46, s14, 1
    s_lshl_b32 s57, s45, 10
    s_lshl_b32 s46, s46, 3
    s_add_u32 s57, s57, s46
    s_add_u32 s57, s57, {SCR}
    v_add_u32 v20, s57, v2
    s_lshl_b32 s45, s45, 3
    s_add_u32 s45, s45, {SCR + 2048}
    v_add_u32 v21, s45, v2
    ds_write_b64 v20, v[{T}:{T+1}]
    ds_write_b64 v21, v[{T+32}:{T+33}]
    v_add_u32 v20, {SCR}, v2
    """)
    for kk in range(HR - 1):
        a(hload(kk, 0)); a(hload(kk, 1))
        a("s_add_u32 s40, s40, 2048")
    a("s_waitcnt lgkmcnt(0)\n s_barrier")
    for i in range(3):
        a(f"ds_read_b128 v[{T+4*i}:{T+4*i+3}], v20 offset:{i*1024}")
    a(f"""
    s_lshl_b32 s45, s48, 3
    s_lshl_b32 s46, s14, 1
    s_add_u32 s45, s45, s46
    s_mul_i32 s45, s45, {HF_TG2}
    s_lshl_b32 s46, s47, 11
    s_add_u32 s45, s45, s46
    s_add_u32 s45, s45, {HF_OFF + 112*2048}
    s_add_u32 s46, s45, {HF_TG2}
    s_waitcnt vmcnt({ndma + 2*(HR-1)}) lgkmcnt(0)
    """)
    O = T + 16
    for i in range(4):
        pq = T + 64 + 4 * i
        for f in range(3):
            d = O + 12 * i + 4 * f
            a(f"v_mfma_f32_16x16x32_bf16 v[{d}:{d+3}], v[{T+4*f}:{T+4*f+3}], v[{pq}:{pq+3}], 0")
    a(f"""
    v_and_b32 v20, 15, v1
    v_lshlrev_b32 v20, 11, v20
    v_lshrrev_b32 v19, 1, v22              ; Q*8
    v_add_u32 v19, v19, v20
    s_lshl_b32 s58, s12, 2
    s_add_u32 s58, s58, s14
    s_lshl_b32 s58, s58, 16                ; (tb*4+w)*32*2048
    s_lshl_b32 s59, s13, 7
    s_add_u32 s58, s58, s59                ; t2=0 base
    s_add_u32 s59, s58, 32768              ; t2=1 base
    """)
    for i in range(4):
        d = O + 12 * i
        a(f"v_add_f32 v{d+8}, {EPS6:#x}, v{d+8}")
        a(f"v_rcp_f32 v{d+8}, v{d+8}")
        a("s_nop 0")
        a(f"v_mov_b32 v{d+9}, v{d+8}")
        for q in range(4):
            a(f"v_pk_mul_f32 v[{d+2*q}:{d+2*q+1}], v[{d+2*q}:{d+2*q+1}], v[{d+8}:{d+9}]")
        for q in range(4):
            a(f"v_cvt_pk_bf16_f32 v{d+q}, v{d+2*q}, v{d+2*q+1}")
        a(f"buffer_store_dwordx4 v[{d}:{d+3}], v2, s[32:35], s{45 + (i>>1)} offen offset:{(i&1)*1024} sc1")
    for t2 in range(2):
        for nt in range(4):
            r = V_X + 8 * t2 + 2 * nt
            a(f"buffer_load_dwordx2 v[{r}:{r+1}], v19, s[20:23], s{58+t2} offen offset:{nt*32}")
    for L in range(32): a(f"v_mov_b32 v{V_ACC+L}, 0")
    a(f"""
    s_mov_b32 s42, 0
    s_mov_b32 s43, {SLOT}
    s_add_u32 s61, s60, {(R-1)*SLOT}
    s_mov_b32 s44, 0                       ; iteration
    s_mov_b32 s37, {R-1}
    s_mov_b32 m0, s61
    v_mov_b32 v21, 0
    """)
    a(dma(0))
    n_after = 2 * (HR - 1 - 3) + 4 + 8 + 1
    a(f"s_waitcnt vmcnt({n_after})\n s_barrier")
    def trreads(ksub, st, bset):
        out = []
        for nt in range(4):
            r = wreg(st, nt); b = 11 + 4 * bset + nt
            out.append(f"ds_read_b64_tr_b16 v[{r}:{r+1}], v{b} offset:{ksub*4096}")
            out.append(f"ds_read_b64_tr_b16 v[{r+2}:{r+3}], v{b} offset:{ksub*4096+2048}")
        return out
    for ins in trreads(0, 0, 0): a(ins)
    if stamps: a("s_memtime s[62:63]\n s_memrealtime s[64:65]")
    NB = min(3 * (4 * (R - 1) - 4), 33)
    a.raw(".p2align 6")
    a.label(f"{name}_loop")
    a(f"""
    s_cmp_eq_u32 s44, 5
    s_cbranch_scc0 {name}_np
    s_lshr_b32 s45, s12, 1
    s_lshl_b32 s45, s45, 5
    v_mov_b32 v21, s45
    global_load_dword v22, v21, s[52:53] sc1
    """)
    a.label(f"{name}_np")
    a(f"""
    s_cmp_eq_u32 s44, 6
    s_cbranch_scc0 {name}_nc
    """)
    a.label(f"{name}_chk")
    a(f"""
    v_readfirstlane_b32 s45, v22
    s_cmp_ge_u32 s45, 32
    s_cbranch_scc1 {name}_nc
    s_sleep 8
    global_load_dword v22, v21, s[52:53] sc1
    s_waitcnt vmcnt(0)
    s_branch {name}_chk
    """)
    a.label(f"{name}_nc")
    a(f"""
    s_cmp_eq_u32 s44, 7
    s_cbranch_scc0 {name}_ns
    s_nop 7
    """)
    for L in range(32): a(f"v_mov_b32 v{V_SAV+L}, v{V_ACC+L}")
    for L in range(32): a(f"v_mov_b32 v{V_ACC+L}, 0")
    a("s_nop 1")
    a.label(f"{name}_ns")
    for kk in range(HR):
        st = kk >> 2; ksub = kk & 3; bs = st & 1; ws = kk & 1
        pre = ["s_waitcnt lgkmcnt(0)"]
        if ksub == 3:
            pre = [f"s_waitcnt vmcnt({NB}) lgkmcnt(0)", "s_barrier"]
        for ins in pre: a(ins)
        if kk == HR - 1:
            a(f"""
            s_add_u32 s45, s44, s14
            s_cmp_eq_u32 s45, 0
            s_cbranch_scc0 {name}_nsig
            s_lshl_b32 s45, s48, 5
            v_mov_b32 v20, s45
            v_mov_b32 v22, 1
            s_mov_b64 exec, 1
            global_atomic_add v20, v22, s[52:53] sc1
            s_mov_b64 exec, -1
            """)
            a.label(f"{name}_nsig")
        rd = trreads((ksub + 1) & 3, ws ^ 1, bs if ksub < 3 else bs ^ 1)
        fill = [[] for _ in range(8)]
        for g in range(8): fill[g].append(rd[g])
        fill[0].append(hload(kk - 1, 0))
        fill[1].append(hload(kk - 1, 1))
        fill[2].append("s_add_u32 s40, s40, 2048")
        di = (ksub + 1) & 3
        if ksub == 3:
            fill[2].append("s_add_u32 s61, s42, s60")
            fill[3].append(f"s_add_u32 s36, s36, {128*2048}")
            fill[3].append("s_add_u32 s37, s37, 1")
            fill[4].append("s_cmp_eq_u32 s37, 28")
            fill[4].append("s_cselect_b32 s16, s6, s16")
            fill[4].append("s_cselect_b32 s17, s75, s17")
            fill[4].append(f"s_cselect_b32 s18, {1024*1024*2}, s18")
            fill[4].append("s_cselect_b32 s36, 0, s36")
            fill[7].append("s_mov_b32 s42, s43")
        fill[5].append(f"s_add_u32 m0, s61, {di*1024}")
        fill[6].append(dma(di))
        if ksub == 1:
            nb_ = 11 + 4 * (bs ^ 1)
            for nt in range(4): fill[3 + (nt >> 1)].append(f"v_add_u32 v{nb_+nt}, s43, v{7+nt}")
        if ksub == 0 :
            pass
        if ksub == 3:
            fill[7].append(f"s_add_u32 s43, s43, {SLOT}")
            fill[7].append(f"s_cmp_ge_u32 s43, {R*SLOT}")
            fill[7].append(f"s_cselect_b32 s43, 0, s43")
        g = 0
        for nt in range(4):
            for t2 in ((0, 1) if nt % 2 == 0 else (1, 0)):
                w = wreg(ws, nt); hh = hreg(kk, t2); d = areg(nt, t2)
                a(f"v_mfma_f32_16x16x32_bf16 v[{d}:{d+3}], v[{w}:{w+3}], a[{hh}:{hh+3}], v[{d}:{d+3}]")
                for ins in fill[g]: a(ins)
                g += 1
    a(f"""
    s_add_u32 s44, s44, 1
    s_cmp_lt_u32 s44, 9
    s_cbranch_scc1 {name}_loop
    """)
    if stamps: a("s_memtime s[66:67]\n s_memrealtime s[68:69]")
    a(f"""
    s_mov_b32 s48, {NLOG2E:#x}
    s_mov_b32 s49, {NLOG2E:#x}
    s_nop 7
    """)
    def rnd(r):
        a(f"v_cvt_pk_bf16_f32 v{r+1}, v{r}, v{r+1}")
        a(f"v_lshlrev_b32 v{r}, 16, v{r+1}")
        a(f"v_and_b32 v{r+1}, 0xffff0000, v{r+1}")
    for t2 in range(2):
        for nt in range(4):
            s_ = areg(nt, t2); y = s_ - V_ACC + V_SAV; xr = V_X + 8 * t2 + 2 * nt
            e = V_T
            for p in range(2): rnd(y + 2*p); rnd(s_ + 2*p)
            for p in range(2): a(f"v_pk_mul_f32 v[{e+2*p}:{e+2*p+1}], v[{y+2*p}:{y+2*p+1}], s[48:49]")
            for k in range(4): a(f"v_exp_f32 v{e+k}, v{e+k}")
            a("s_nop 0")
            for p in range(2): a(f"v_pk_add_f32 v[{e+2*p}:{e+2*p+1}], v[{e+2*p}:{e+2*p+1}], 1.0 op_sel_hi:[1,0]")
            for k in range(4): a(f"v_rcp_f32 v{e+k}, v{e+k}")
            a("s_nop 0")
            for p in range(2): a(f"v_pk_mul_f32 v[{y+2*p}:{y+2*p+1}], v[{y+2*p}:{y+2*p+1}], v[{e+2*p}:{e+2*p+1}]")
            for p in range(2): rnd(y + 2*p)
            for p in range(2): a(f"v_pk_mul_f32 v[{y+2*p}:{y+2*p+1}], v[{y+2*p}:{y+2*p+1}], v[{s_+2*p}:{s_+2*p+1}]")
            for p in range(2): rnd(y + 2*p)
            for p in range(2):
                a(f"v_lshlrev_b32 v{e+2*p}, 16, v{xr+p}")
                a(f"v_and_b32 v{e+2*p+1}, 0xffff0000, v{xr+p}")
            for p in range(2): a(f"v_pk_add_f32 v[{y+2*p}:{y+2*p+1}], v[{y+2*p}:{y+2*p+1}], v[{e+2*p}:{e+2*p+1}]")
            for p in range(2): a(f"v_cvt_pk_bf16_f32 v{xr+p}, v{y+2*p}, v{y+2*p+1}")
            a(f"buffer_store_dwordx2 v[{xr}:{xr+1}], v19, s[24:27], s{58+t2} offen offset:{nt*32}")
    if stamps:
        a(f"""
        s_waitcnt vmcnt(0)
        s_memtime s[70:71]
        s_memrealtime s[72:73]
        s_waitcnt lgkmcnt(0)
        s_sub_u32 s66, s66, s62
        s_sub_u32 s70, s70, s62
        v_mov_b32 v4, s76
        v_mov_b32 v5, s64
        v_mov_b32 v6, s68
        v_mov_b32 v7, s72
        v_mov_b32 v10, s66
        v_mov_b32 v11, s70
        v_lshlrev_b32 v8, 4, v0
        s_lshl_b32 s45, s2, 12
        s_add_u32 s45, s45, {34<<20}
        buffer_store_dwordx4 v[4:7], v8, s[32:35], s45 offen
        s_add_u32 s45, s45, {1<<20}
        buffer_store_dwordx2 v[10:11], v8, s[32:35], s45 offen
        """)
    a.label(f"{name}_end")
    a("s_endpgm")
    a.label(f"{name}_codeend")
    return a.text(), 256 + 128, 80, 256, max(R * SLOT + 4096, 84 * 1024)

def build(XR=4, R=5, stamps=False, R2=5):
    k0, v0, s0, a0 = gen_ln("ln_kernel", stamps)
    k1, v1, s1, a1, lds1 = gen_gemm1("gemm1_kernel", XR, R, stamps)
    k2, v2, s2, a2, lds2 = gen_gemm2("gemm2_kernel", R2, stamps)
    launches = [("ln_kernel", 256, 256, 1024), ("gemm1_kernel", 256, 256, lds1), ("gemm2_kernel", 256, 256, lds2)]
    kernels = [("ln_kernel", k0, v0, s0, a0), ("gemm1_kernel", k1, v1, s1, a1), ("gemm2_kernel", k2, v2, s2, a2)]
    return assemble_file(launches, kernels)

if __name__ == "__main__":
    open("k_stamps.s", "w").write(build(stamps=True))
    open("recurrent_scan__linear_attn_block__swiglu_ffn__prompt.s", "w").write(build())
```

```python
import sys
from asmlib import *

XF_OFF  = 0
PQ_OFF  = 4 << 20
KV_OFF  = 8 << 20
ZP_OFF  = 9 << 20
HF_OFF  = 16 << 20
WS_USED = 40 << 20
HF_TG2  = 144 * 2048
LOG2E   = 0x3fb8aa3b
NLOG2E  = 0xbfb8aa3b
EPS6    = 0x358637bd
EPS5    = 0x3727c5ac

def srd(a, d, lo, hi, nbytes):
    a(f"""
    s_mov_b32 s{d}, {lo}
    s_and_b32 s{d+1}, {hi}, 0xffff
    s_mov_b32 s{d+2}, {nbytes}
    s_mov_b32 s{d+3}, 0x00020000
    """)

def code_warm(a, name, vtmp, vdst, spair):
    a(f"""
    s_getpc_b64 s[{spair}:{spair+1}]
    v_lshlrev_b32 v{vtmp}, 7, v0
    v_min_u32 v{vtmp}, {name}_codeend-{name}-64, v{vtmp}
    global_load_dword v{vdst}, v{vtmp}, s[{spair}:{spair+1}]
    """)

def gen_ln(name, stamps=False, pf_stride=128, pf=()):
    a = Asm()
    a(f"""
    s_cmp_ge_u32 s2, 256
    s_cbranch_scc1 {name}_end
    s_load_dwordx2 s[4:5], s[0:1], 0
    s_load_dwordx2 s[6:7], s[0:1], 72
    s_load_dwordx4 s[24:27], s[0:1], 8
    s_load_dwordx4 s[28:31], s[0:1], 32
    s_load_dwordx2 s[32:33], s[0:1], 48
    {"s_memrealtime s[20:21]" if stamps else ""}
    v_and_b32 v1, 7, v0
    v_bfe_u32 v2, v0, 3, 3
    v_lshrrev_b32 v3, 6, v0
    v_lshlrev_b32 v4, 11, v1
    v_lshl_add_u32 v4, v2, 4, v4
    v_lshl_add_u32 v4, v3, 9, v4
    s_lshl_b32 s3, s2, 14
    v_lshlrev_b32 v5, 15, v3
    v_lshrrev_b32 v6, 2, v2
    v_lshl_add_u32 v5, v6, 12, v5
    v_and_b32 v6, 3, v2
    v_lshl_add_u32 v5, v6, 8, v5
    v_lshl_add_u32 v5, v1, 4, v5
    v_lshlrev_b32 v7, 6, v1
    v_bfe_u32 v6, v0, 4, 2
    v_lshl_add_u32 v6, v6, 2, v7
    v_lshl_add_u32 v6, v3, 4, v6
    s_lshr_b32 s16, s2, 3
    s_lshl_b32 s16, s16, 17
    s_bfe_u32 s17, s2, 0x20001
    s_lshl_b32 s17, s17, 10
    s_add_u32 s16, s16, s17
    s_and_b32 s17, s2, 1
    s_lshl_b32 s17, s17, 7
    s_add_u32 s16, s16, s17
    s_add_u32 s17, s16, 8192
    s_add_u32 s18, s16, 16384
    s_add_u32 s19, s16, 24576
    s_waitcnt lgkmcnt(0)
    """)
    srd(a, 8, "s4", "s5", 2048*1024*2)
    srd(a, 12, "s6", "s7", 4 << 20)
    for i in range(4):
        a(f"buffer_load_dwordx4 v[{8+4*i}:{11+4*i}], v4, s[8:11], s3 offen offset:{128*i}")
    npf = 0
    if pf:
        lg = {64: 6, 128: 7, 256: 8}[pf_stride]
        a(f"v_lshlrev_b32 v30, {lg}, v0")
        per = 256 * pf_stride
        for (ka, start, nbytes) in pf:
            sreg = {8: 24, 16: 26, 32: 28, 40: 30, 48: 32}[ka]
            srd(a, 36, f"s{sreg}", f"s{sreg+1}", start + nbytes)
            chunk = -(-nbytes // (256 * pf_stride)) * pf_stride
            rounds = -(-chunk // per)
            a(f"s_mul_i32 s40, s2, {chunk}")
            a(f"s_add_u32 s40, s40, {start}")
            for r in range(rounds):
                rem = min(per, chunk - r * per)
                if rem < per:
                    a(f"v_min_u32 v29, {rem - pf_stride}, v30")
                    a(f"buffer_load_dword v31, v29, s[36:39], s40 offen")
                else:
                    a(f"buffer_load_dword v31, v30, s[36:39], s40 offen")
                npf += 1
                if r < rounds - 1: a(f"s_add_u32 s40, s40, {per}")
    for i in range(4):
        a(f"s_waitcnt vmcnt({3-i+npf})")
        for d in range(4):
            s = 8 + 4*i + d
            a(f"v_lshlrev_b32 v{32+2*(4*i+d)}, 16, v{s}")
            a(f"v_and_b32 v{33+2*(4*i+d)}, 0xffff0000, v{s}")
    def tree(src, tmp):
        for i in range(8):
            a(f"v_pk_add_f32 v[{tmp+2*i}:{tmp+2*i+1}], v[{src+4*i}:{src+4*i+1}], v[{src+4*i+2}:{src+4*i+3}]")
        for n in (4, 2, 1):
            for i in range(n):
                a(f"v_pk_add_f32 v[{tmp+2*i}:{tmp+2*i+1}], v[{tmp+2*i}:{tmp+2*i+1}], v[{tmp+2*(i+n)}:{tmp+2*(i+n)+1}]")
        a(f"v_add_f32 v{tmp}, v{tmp}, v{tmp+1}")
    def wg_reduce(tmp, ldsoff):
        a(f"""
        s_nop 1
        v_add_f32_dpp v{tmp}, v{tmp}, v{tmp} row_ror:8 row_mask:0xf bank_mask:0xf
        ds_write_b32 v6, v{tmp} offset:{ldsoff}
        s_waitcnt lgkmcnt(0)
        s_barrier
        """)
        for i in range(4):
            a(f"ds_read_b128 v[{tmp+4*i}:{tmp+4*i+3}], v7 offset:{ldsoff+16*i}")
        a("s_waitcnt lgkmcnt(0)")
        for n in (4, 2, 1):
            for i in range(n):
                a(f"v_pk_add_f32 v[{tmp+2*i}:{tmp+2*i+1}], v[{tmp+2*i}:{tmp+2*i+1}], v[{tmp+2*(i+n)}:{tmp+2*(i+n)+1}]")
        a(f"v_add_f32 v{tmp}, v{tmp}, v{tmp+1}")
    tree(32, 64)
    wg_reduce(64, 0)
    a("""
    v_mul_f32 v24, 0x3a800000, v64
    v_mov_b32 v25, v24
    """)
    for i in range(16):
        a(f"v_pk_add_f32 v[{80+2*i}:{81+2*i}], v[{32+2*i}:{33+2*i}], v[24:25] neg_lo:[0,1] neg_hi:[0,1]")
    for i in range(16):
        a(f"v_pk_mul_f32 v[{80+2*i}:{81+2*i}], v[{80+2*i}:{81+2*i}], v[{80+2*i}:{81+2*i}]")
    tree(80, 64)
    wg_reduce(64, 512)
    a(f"""
    v_mul_f32 v26, 0x3a800000, v64       ; var
    v_cvt_pk_bf16_f32 v28, v24, v26
    v_lshlrev_b32 v24, 16, v28           ; m_bf
    v_and_b32 v26, 0xffff0000, v28       ; v_bf
    v_add_f32 v26, {EPS5:#x}, v26
    v_cvt_pk_bf16_f32 v26, v26, v26
    v_and_b32 v26, 0xffff0000, v26
    v_sqrt_f32 v26, v26
    s_nop 0
    v_cvt_pk_bf16_f32 v26, v26, v26
    v_and_b32 v26, 0xffff0000, v26
    v_rcp_f32 v26, v26
    v_mov_b32 v25, v24
    s_nop 0
    v_mov_b32 v27, v26
    """)
    for i in range(16):
        a(f"v_pk_add_f32 v[{32+2*i}:{33+2*i}], v[{32+2*i}:{33+2*i}], v[24:25] neg_lo:[0,1] neg_hi:[0,1]")
    for i in range(16):
        a(f"v_cvt_pk_bf16_f32 v{8+i}, v{32+2*i}, v{33+2*i}")
    for i in range(16):
        a(f"v_lshlrev_b32 v{32+2*i}, 16, v{8+i}")
        a(f"v_and_b32 v{33+2*i}, 0xffff0000, v{8+i}")
    for i in range(16):
        a(f"v_pk_mul_f32 v[{32+2*i}:{33+2*i}], v[{32+2*i}:{33+2*i}], v[26:27]")
    for i in range(4):
        for d in range(4):
            k = 4*i + d
            a(f"v_cvt_pk_bf16_f32 v{8+k}, v{32+2*k}, v{33+2*k}")
        a(f"buffer_store_dwordx4 v[{8+4*i}:{11+4*i}], v5, s[12:15], s{16+i} offen")
    if stamps:
        a(f"""
        s_waitcnt vmcnt(0)
        s_memrealtime s[22:23]
        s_waitcnt lgkmcnt(0)
        s_mov_b32 s14, {WS_USED}
        v_mov_b32 v4, s20
        v_mov_b32 v5, s22
        v_lshlrev_b32 v8, 4, v0
        s_lshl_b32 s3, s2, 12
        s_add_u32 s3, s3, {38<<20}
        buffer_store_dwordx2 v[4:5], v8, s[12:15], s3 offen
        """)
    a.label(f"{name}_end")
    a("s_endpgm")
    return a.text(), 112, 48, 112

def gen_gemm1(name, XR=4, R=5, stamps=False, L0=256, pf1=True):
    a = Asm()
    SLOT = 20480
    NV = 58
    VB = 24
    A_W = 0
    A_X = 40
    A_ACC = A_X + 16 * XR
    def accr(ct, tt):
        L = ct * 4 + tt
        return ("v", VB + 4 * L) if L < NV else ("a", A_ACC + 4 * (L - NV))
    def acc(ct, tt):
        f, r = accr(ct, tt)
        return f"{f}[{r}:{r+3}]"
    def wfrag(c): return A_W + 4 * (c % 10)
    def xfrag(u, tt): return A_X + 16 * (u % XR) + 4 * tt
    a(f"""
    s_cmp_ge_u32 s2, 256
    s_cbranch_scc1 {name}_end
    s_load_dwordx4 s[4:7], s[0:1], 8
    s_load_dwordx4 s[52:55], s[0:1], 32
    s_load_dwordx2 s[8:9], s[0:1], 48
    s_load_dwordx2 s[10:11], s[0:1], 72
    """)
    if stamps: a("s_memrealtime s[76:77]")
    code_warm(a, name, 17, 23, 56)
    a(f"""
    v_and_b32 v1, 63, v0
    v_lshrrev_b32 v17, 6, v0
    v_lshlrev_b32 v16, 4, v1
    v_readfirstlane_b32 s14, v17
    s_and_b32 s12, s2, 7
    s_lshl_b32 s12, s12, 2
    s_bfe_u32 s13, s2, 0x20003
    s_add_u32 s12, s12, s13          ; j
    s_lshr_b32 s13, s2, 5            ; m
    s_mul_i32 s15, s14, 5            ; 5w
    s_movk_i32 s74, 4682
    """)
    for i in range(5):
        a(f"""
        s_add_u32 s45, s15, {i}          ; n
        s_cmp_lt_u32 s45, 13
        s_cselect_b32 s46, 6, 13
        s_cmp_lt_u32 s45, 6
        s_cselect_b32 s46, 0, s46
        s_cselect_b32 s47, 5462, s74
        s_cselect_b32 s48, 12, 14
        v_mov_b32 v21, s47
        s_cselect_b32 s50, 2048, 64
        s_cselect_b32 s51, 2, 0
        s_cselect_b32 s47, 64, 224
        s_lshl_b32 s49, s48, 9
        s_sub_u32 s45, s45, s46
        s_lshl_b32 s45, s45, 6
        s_mul_i32 s47, s47, s12
        v_add_u32 v17, s45, v1
        v_mul_u32_u24 v18, v21, v17
        v_lshrrev_b32 v18, 16, v18
        v_mul_u32_u24 v19, s48, v18
        v_sub_u32 v17, v17, v19
        v_lshrrev_b32 v19, 1, v18
        v_and_b32 v19, s51, v19
        v_xor_b32 v17, v17, v19
        v_and_b32 v19, 3, v18
        v_bfe_u32 v20, v18, 4, 1
        v_lshl_or_b32 v19, v20, 2, v19
        v_bfe_u32 v20, v18, 2, 2
        v_lshl_or_b32 v19, v20, 3, v19
        v_mul_u32_u24 v19, s49, v19
        v_lshrrev_b32 v20, 2, v17
        v_mul_u32_u24 v20, s50, v20
        v_and_b32 v17, 3, v17
        v_lshl_add_u32 v20, v17, 4, v20
        v_add3_u32 v{2+i}, v19, v20, s47
        """)
    a(f"""
    v_bfe_u32 v17, v1, 2, 4
    v_and_b32 v18, 3, v1
    v_lshlrev_b32 v18, 3, v18          ; (i&3)*8
    v_mul_u32_u24 v9, 224, v17
    v_add_u32 v9, v9, v18
    v_mul_u32_u24 v7, 192, v17
    v_add_u32 v7, v7, v18
    v_bfe_u32 v19, v1, 4, 1
    v_lshlrev_b32 v19, 5, v19          ; (Q&1)*32
    v_sub_u32 v8, v7, v19
    v_add_u32 v7, v7, v19
    v_mov_b32 v10, v7
    v_mov_b32 v11, v8
    v_mov_b32 v12, v9
    s_waitcnt lgkmcnt(0)
    """)
    QB = 1024 * 3072 * 2; GB = 1024 * 3584 * 2
    def sel_srd(d, w_gate_from, w_up_from):
        a(f"""
        s_cmp_lt_u32 s14, {w_up_from}
        s_cselect_b32 s{d}, s52, s54
        s_cselect_b32 s{d+1}, s53, s55
        s_cmp_lt_u32 s14, {w_gate_from}
        s_cselect_b32 s{d}, s4, s{d}
        s_cselect_b32 s{d+1}, s5, s{d+1}
        s_cselect_b32 s{d+2}, {QB}, s58
        s_and_b32 s{d+1}, s{d+1}, 0xffff
        s_mov_b32 s{d+3}, 0x00020000
        """)
    a(f"s_mov_b32 s58, {GB}")
    sel_srd(16, 2, 3)
    sel_srd(20, 1, 3)
    sel_srd(24, 1, 2)
    a(f"""
    s_mov_b32 s59, {32*7168}
    s_cmp_lt_u32 s14, 2
    s_cselect_b32 s38, {32*6144}, s59
    s_cmp_lt_u32 s14, 1
    s_cselect_b32 s39, {32*6144}, s59
    s_mov_b32 s36, 0
    s_mov_b32 s37, 0
    s_lshl_b32 s45, s13, 2
    s_add_u32 s45, s45, s14
    s_lshl_b32 s45, s45, 17
    s_add_u32 s28, s10, s45
    s_addc_u32 s29, s11, 0
    s_and_b32 s29, s29, 0xffff
    s_mov_b32 s30, 131072
    s_mov_b32 s31, 0x00020000
    s_mov_b32 s40, 0
    s_mul_i32 s60, s14, 5120           ; w*5120
    """)
    srd(a, 32, "s10", "s11", WS_USED)
    if pf1:
        srd(a, 80, "s52", "s53", GB)
        srd(a, 84, "s54", "s55", GB)
        srd(a, 88, "s4", "s5", QB)
        srd(a, 92, "s8", "s9", 3584*1024*2)
        a(f"""
        s_lshl_b32 s99, s2, 2
        s_add_u32 s99, s99, s14
        s_lshl_b32 s99, s99, 10            ; (b*4+w)*1024
        s_add_u32 s96, s99, {L0*7168}
        s_add_u32 s98, s99, {L0*6144}
        s_mov_b32 s78, s99
        s_and_b32 s79, s7, 0xffff
        """)
    srds = [16, 20, 20, 24, 24]; offs = [36, 37, 37, 37, 37]
    def dma(i):
        return f"buffer_load_dwordx4 v{2+i}, s[{srds[i]}:{srds[i]+3}], s{offs[i]} offen lds"
    def xload(u, tt):
        r = xfrag(u, tt)
        return f"buffer_load_dwordx4 a[{r}:{r+3}], v16, s[28:31], s40 offen offset:{tt*1024}"
    def pro_dma(stage):
        for i in range(5):
            a(f"s_add_u32 m0, s60, {stage*SLOT + i*1024}")
            a("s_nop 0")
            a(dma(i))
        a("s_add_u32 s36, s36, s38\n s_add_u32 s37, s37, s39")
    def pro_x(stage):
        for tt in range(4): a(xload(stage, tt))
        a("s_add_u32 s40, s40, 4096")
        if pf1:
            pu = stage % 3
            so = [96, 96, 98][pu]
            a(f"buffer_load_dword v23, v16, s[{80+4*pu}:{83+4*pu}], s{so} offen")
            if pu != 0: a(f"s_add_u32 s{so}, s{so}, {1<<20}")
    order = []
    for u in range(-max(XR, R), 0):
        if u + XR - 1 >= 0: order.append(("x", u + XR - 1))
        if u + R - 1 >= 0: order.append(("d", u + R - 1))
    for kind, st in order:
        (pro_x if kind == "x" else pro_dma)(st)
    last = max(order.index(("x", 0)), order.index(("d", 0)))
    n_after = sum((5 if pf1 else 4) if k == "x" else 5 for k, _ in order[last+1:])
    if pf1 and order[last][0] == "x": n_after += 1
    for L in range(NV * 4): a(f"v_mov_b32 v{VB+L}, 0")
    for L in range((80 - NV) * 4): a(f"v_accvgpr_write_b32 a{A_ACC+L}, 0")
    a(f"""
    s_mov_b32 s41, {(R-1)*SLOT}
    s_mov_b32 s42, 0
    s_mov_b32 s43, {SLOT}
    s_mov_b32 s44, {32 // XR}
    s_waitcnt vmcnt({n_after})
    s_barrier
    """)
    def trreads(c, bset):
        b = 10 + 3 * bset
        r = wfrag(c)
        if c < 6:
            base = b + (c & 1); off = c * 32; step = 16 * 192
        else:
            base = b + 2
            u = 1 if c >= 13 else 0
            t = c - (13 if u else 6)
            off = 6144 + u * 7168 + t * 32; step = 16 * 224
        return [f"ds_read_b64_tr_b16 a[{r}:{r+1}], v{base} offset:{off}",
                f"ds_read_b64_tr_b16 a[{r+2}:{r+3}], v{base} offset:{off+step}"]
    for c in range(9):
        for ins in trreads(c, 0): a(ins)
    a("s_waitcnt lgkmcnt(8)")
    if stamps:
        a("s_memtime s[62:63]\n s_memrealtime s[64:65]")
    PS = 10 if pf1 else 9
    if R <= XR: NB = PS * (R - 3) + (PS - 5)
    else: NB = PS * (XR - 3) + PS + (PS - 9)
    a.raw(".p2align 6")
    a.label(f"{name}_loop")
    for u in range(XR):
        bs = u & 1
        gaps = {}
        def put(c, g, ins): gaps.setdefault((c, g), []).append(ins)
        for c in range(20):
            cn = c + 9
            rd = trreads(cn, bs) if cn < 20 else trreads(cn - 20, bs ^ 1)
            put(c, 0, rd[0]); put(c, 1, rd[1])
        for tt in range(4): put(tt, 2, xload(u - 1, tt))
        put(4, 2, "s_add_u32 s40, s40, 4096")
        if pf1:
            pu = u % 4
            so = [96, 96, 98, 99][pu]
            put(4, 3, f"buffer_load_dword v23, v16, s[{80+4*pu}:{83+4*pu}], s{so} offen")
            if pu != 0: put(7, 2, f"s_add_u32 s{so}, s{so}, {1<<20}")
            if pu == 2:
                put(15, 2, f"s_cmp_ge_u32 s98, {QB}")
                put(15, 2, f"s_cselect_b32 s88, s6, s88")
                put(15, 2, f"s_cselect_b32 s89, s79, s89")
                put(15, 2, f"s_cselect_b32 s90, {1024*1024*2}, s90")
                put(15, 2, f"s_cselect_b32 s98, s78, s98")
        nb = 10 + 3 * (bs ^ 1)
        put(5, 2, f"v_add_u32 v{nb}, s43, v7")
        put(5, 3, f"v_add_u32 v{nb+1}, s43, v8")
        put(6, 2, f"v_add_u32 v{nb+2}, s43, v9")
        put(6, 3, "s_add_u32 s61, s41, s60")
        for c in (3, 7, 11, 15, 19): put(c, 3, "s_waitcnt lgkmcnt(8)")
        put(10, 2, f"s_waitcnt vmcnt({NB})")
        put(10, 3, "s_barrier")
        dpos = [12, 13, 14, 16, 17]
        for i in range(5):
            put(dpos[i], 2, f"s_add_u32 m0, s61, {i*1024}")
            put(dpos[i], 3, dma(i))
        put(18, 2, "s_add_u32 s36, s36, s38")
        put(18, 3, "s_add_u32 s37, s37, s39")
        put(8, 2, "s_mov_b32 s41, s42")
        put(8, 3, "s_mov_b32 s42, s43")
        put(9, 2, f"s_add_u32 s43, s43, {SLOT}")
        put(9, 3, f"s_cmp_ge_u32 s43, {R*SLOT}")
        put(9, 3, f"s_cselect_b32 s43, 0, s43")
        if u == XR - 1:
            put(19, 2, "s_sub_u32 s44, s44, 1")
            put(19, 2, "s_cmp_lg_u32 s44, 0")
        for c in range(20):
            tts = [0, 1, 2, 3] if c % 2 == 0 else [3, 2, 1, 0]
            w = wfrag(c)
            for g, tt in enumerate(tts):
                x = xfrag(u, tt)
                A, B = (f"a[{w}:{w+3}]", f"a[{x}:{x+3}]")
                if 2 <= c < 6: A, B = B, A
                a(f"v_mfma_f32_16x16x32_bf16 {acc(c,tt)}, {A}, {B}, {acc(c,tt)}")
                for ins in gaps.get((c, g), []): a(ins)
    a(f"s_cbranch_scc1 {name}_loop")
    if stamps:
        a("s_memtime s[66:67]\n s_memrealtime s[68:69]")
    a(f"""
    s_mov_b32 s50, {LOG2E:#x}
    s_mov_b32 s51, {LOG2E:#x}
    s_mov_b32 s48, {NLOG2E:#x}
    s_mov_b32 s49, {NLOG2E:#x}
    s_mov_b32 s46, {EPS6:#x}
    s_mov_b32 s47, {EPS6:#x}
    v_mov_b32 v2, 0x3f803f80
    v_mov_b32 v3, 0x3f803f80
    v_mov_b32 v4, 0x3f803f80
    v_mov_b32 v5, 0x3f803f80
    s_waitcnt vmcnt(0) lgkmcnt(0)
    s_barrier
    """)
    def phi_tile(ct, tt):
        f, r = accr(ct, tt); assert f == "v"
        a(f"v_pk_mul_f32 v[18:19], v[{r}:{r+1}], s[50:51]")
        a(f"v_pk_mul_f32 v[20:21], v[{r+2}:{r+3}], s[50:51]")
        for k in range(4): a(f"v_exp_f32_e64 v{18+k}, v{18+k} clamp")
        for k in range(4): a(f"v_max_f32 v{r+k}, 0, v{r+k}")
        a(f"v_pk_add_f32 v[{r}:{r+1}], v[{r}:{r+1}], v[18:19]")
        a(f"v_pk_add_f32 v[{r+2}:{r+3}], v[{r+2}:{r+3}], v[20:21]")
        a(f"v_pk_add_f32 v[{r}:{r+1}], v[{r}:{r+1}], s[46:47]")
        a(f"v_pk_add_f32 v[{r+2}:{r+3}], v[{r+2}:{r+3}], s[46:47]")
    def pack_pair(r0, r1):
        a(f"v_cvt_pk_bf16_f32 v{r0}, v{r0}, v{r0+1}")
        a(f"v_cvt_pk_bf16_f32 v{r0+1}, v{r0+2}, v{r0+3}")
        a(f"v_cvt_pk_bf16_f32 v{r0+2}, v{r1}, v{r1+1}")
        a(f"v_cvt_pk_bf16_f32 v{r0+3}, v{r1+2}, v{r1+3}")
    for ca in (2, 3):
        for tt in range(4): phi_tile(ca, tt)
    for ca in (2, 3, 4, 5):
        for p in range(2):
            pack_pair(accr(ca, 2*p)[1], accr(ca, 2*p+1)[1])
    free = [accr(ca, tt)[1] for ca in (2, 3, 4, 5) for tt in (1, 3)]
    D = {}
    idx = 0
    for aa in range(2):
        for bb in range(2):
            D[(aa, bb)] = free[idx]; idx += 1
    for aa in range(2):
        D[(aa, 'z')] = free[idx]; idx += 1
    a("s_nop 1")
    for p in range(2):
        for aa in range(2):
            pk = accr(2 + aa, 2*p)[1]
            for bb in (0, 1, 'z'):
                vb = accr(4 + bb, 2*p)[1] if bb != 'z' else 2
                d = D[(aa, bb)]
                c = "0" if p == 0 else f"v[{d}:{d+3}]"
                a(f"v_mfma_f32_16x16x32_bf16 v[{d}:{d+3}], v[{pk}:{pk+3}], v[{vb}:{vb+3}], {c}")
    a(f"""
    s_lshl_b32 s45, s13, 5
    s_add_u32 s45, s45, s12
    s_lshl_b32 s45, s45, 2
    s_add_u32 s45, s45, s14
    s_lshl_b32 s45, s45, 12
    s_add_u32 s45, s45, {PQ_OFF}
    s_mul_i32 s56, s14, 6144
    v_add_u32 v17, s56, v16
    """)
    for tt in range(4):
        phi_tile(0, tt); phi_tile(1, tt)
        r0 = accr(0, tt)[1]; r1 = accr(1, tt)[1]
        pack_pair(r0, r1)
        a(f"buffer_store_dwordx4 v[{r0}:{r0+3}], v16, s[32:35], s45 offen offset:{tt*1024}")
        if tt == 0:
            for ti, key in enumerate([(0,0),(0,1),(1,0),(1,1),(0,'z'),(1,'z')]):
                d = D[key]
                a(f"ds_write_b128 v17, v[{d}:{d+3}] offset:{ti*1024}")
    a("s_waitcnt lgkmcnt(0)\n s_barrier")
    t0 = accr(2, 0)[1]
    a(f"""
    s_lshl_b32 s56, s14, 10
    v_add_u32 v17, s56, v16
    s_and_b32 s57, s14, 1
    s_lshl_b32 s56, s57, 10
    v_add_u32 v22, s56, v16
    """)
    for w in range(4):
        a(f"ds_read_b128 v[{t0+4*w}:{t0+4*w+3}], v17 offset:{w*6144}")
    for w in range(4):
        a(f"ds_read_b128 v[{t0+16+4*w}:{t0+16+4*w+3}], v22 offset:{w*6144+4096}")
    a(f"""
    s_lshl_b32 s56, s13, 3
    s_lshl_b32 s58, s14, 1
    s_add_u32 s56, s56, s58
    s_mul_i32 s56, s56, {HF_TG2}
    s_mul_i32 s58, s12, 7
    s_lshr_b32 s58, s58, 1
    s_lshl_b32 s58, s58, 11
    s_add_u32 s56, s56, s58
    s_add_u32 s56, s56, {HF_OFF}       ; h base
    s_lshl_b32 s58, s12, 3
    s_add_u32 s58, s58, s13
    s_lshl_b32 s59, s58, 12
    s_add_u32 s59, s59, {KV_OFF}
    s_lshl_b32 s58, s58, 7
    s_lshl_b32 s57, s57, 6
    s_add_u32 s58, s58, s57
    s_add_u32 s58, s58, {ZP_OFF}
    v_and_b32 v22, 48, v1              ; Q*16
    s_waitcnt lgkmcnt(0)
    """)
    for base in (t0, t0 + 16):
        a(f"v_pk_add_f32 v[{base}:{base+1}], v[{base}:{base+1}], v[{base+4}:{base+5}]")
        a(f"v_pk_add_f32 v[{base+2}:{base+3}], v[{base+2}:{base+3}], v[{base+6}:{base+7}]")
        a(f"v_pk_add_f32 v[{base+8}:{base+9}], v[{base+8}:{base+9}], v[{base+12}:{base+13}]")
        a(f"v_pk_add_f32 v[{base+10}:{base+11}], v[{base+10}:{base+11}], v[{base+14}:{base+15}]")
        a(f"v_pk_add_f32 v[{base}:{base+1}], v[{base}:{base+1}], v[{base+8}:{base+9}]")
        a(f"v_pk_add_f32 v[{base+2}:{base+3}], v[{base+2}:{base+3}], v[{base+10}:{base+11}]")
    a(f"buffer_store_dwordx4 v[{t0}:{t0+3}], v17, s[32:35], s59 offen")
    a(f"buffer_store_dwordx4 v[{t0+16}:{t0+19}], v22, s[32:35], s58 offen")
    hb0 = accr(4, 0)[1]
    a("v_add_u32 v17, 8, v16")
    a("s_bitcmp1_b32 s12, 0")
    a("s_cselect_b32 s57, 1, 0")
    for tt in range(4):
        hb = hb0 + 16 * (tt & 1)
        for i in range(7):
            fg, g = accr(6 + i, tt); assert fg == "v"
            fu, u = accr(13 + i, tt)
            if fu == "a":
                for k in range(4): a(f"v_accvgpr_read_b32 v{6+k}, a{u+k}")
                u = 6
            a(f"v_pk_mul_f32 v[18:19], v[{g}:{g+1}], s[48:49]")
            a(f"v_pk_mul_f32 v[20:21], v[{g+2}:{g+3}], s[48:49]")
            for k in range(4): a(f"v_exp_f32 v{18+k}, v{18+k}")
            a(f"v_pk_mul_f32 v[{g}:{g+1}], v[{g}:{g+1}], v[{u}:{u+1}]")
            a(f"v_pk_mul_f32 v[{g+2}:{g+3}], v[{g+2}:{g+3}], v[{u+2}:{u+3}]")
            a(f"v_pk_add_f32 v[18:19], v[18:19], 1.0 op_sel_hi:[1,0]")
            a(f"v_pk_add_f32 v[20:21], v[20:21], 1.0 op_sel_hi:[1,0]")
            for k in range(4): a(f"v_rcp_f32 v{18+k}, v{18+k}")
            a("s_nop 0")
            a(f"v_pk_mul_f32 v[{g}:{g+1}], v[{g}:{g+1}], v[18:19]")
            a(f"v_pk_mul_f32 v[{g+2}:{g+3}], v[{g+2}:{g+3}], v[20:21]")
            a(f"v_cvt_pk_bf16_f32 v{hb+2*i}, v{g}, v{g+1}")
            a(f"v_cvt_pk_bf16_f32 v{hb+2*i+1}, v{g+2}, v{g+3}")
        off = (tt >> 1) * HF_TG2 + (tt & 1) * 1024
        a(f"s_add_u32 s58, s56, {off}")
        a(f"s_add_u32 s59, s56, {off + 4096}")
        a(f"s_cmp_eq_u32 s57, 0")
        a(f"s_cbranch_scc0 {name}_odd{tt}")
        a(f"buffer_store_dwordx4 v[{hb}:{hb+3}], v16, s[32:35], s58 offen")
        a(f"buffer_store_dwordx4 v[{hb+4}:{hb+7}], v16, s[32:35], s58 offen offset:2048")
        a(f"buffer_store_dwordx4 v[{hb+8}:{hb+11}], v16, s[32:35], s59 offen")
        a(f"buffer_store_dwordx2 v[{hb+12}:{hb+13}], v16, s[32:35], s59 offen offset:2048")
        a(f"s_branch {name}_join{tt}")
        a.label(f"{name}_odd{tt}")
        a(f"buffer_store_dwordx2 v[{hb}:{hb+1}], v17, s[32:35], s58 offen")
        a(f"buffer_store_dwordx4 v[{hb+2}:{hb+5}], v16, s[32:35], s58 offen offset:2048")
        a(f"buffer_store_dwordx4 v[{hb+6}:{hb+9}], v16, s[32:35], s59 offen")
        a(f"buffer_store_dwordx4 v[{hb+10}:{hb+13}], v16, s[32:35], s59 offen offset:2048")
        a.label(f"{name}_join{tt}")
    if stamps:
        a(f"""
        s_waitcnt vmcnt(0)
        s_memtime s[70:71]
        s_memrealtime s[72:73]
        s_waitcnt lgkmcnt(0)
        s_sub_u32 s66, s66, s62
        s_sub_u32 s70, s70, s62
        v_mov_b32 v4, s76
        v_mov_b32 v5, s64
        v_mov_b32 v6, s68
        v_mov_b32 v7, s72
        v_mov_b32 v10, s66
        v_mov_b32 v11, s70
        v_lshlrev_b32 v8, 4, v0
        s_lshl_b32 s45, s2, 12
        s_add_u32 s45, s45, {36<<20}
        buffer_store_dwordx4 v[4:7], v8, s[32:35], s45 offen
        s_add_u32 s45, s45, {1<<20}
        buffer_store_dwordx2 v[10:11], v8, s[32:35], s45 offen
        """)
    a.label(f"{name}_end")
    a("s_endpgm")
    a.label(f"{name}_codeend")
    nv = 256 + A_ACC + (80 - NV) * 4
    return a.text(), nv, 100, 256, max(R * SLOT, 24576)


def gen_gemm2(name, R=5, stamps=False, fake=0, hflag='sc1'):
    a = Asm()
    SLOT = 16384
    HR = 16
    V_X = 24
    V_W = 40
    V_ACC = 104
    V_SAV = 136
    V_T = 168
    def hreg(kk, t2): return 8 * (kk % HR) + 4 * t2
    def wreg(st, nt): return V_W + 16 * st + 4 * nt
    def areg(nt, t2): return V_ACC + 8 * nt + 4 * t2
    a(f"""
    s_cmp_ge_u32 s2, 256
    s_cbranch_scc1 {name}_end
    s_load_dwordx2 s[4:5], s[0:1], 0       ; x
    s_load_dwordx2 s[6:7], s[0:1], 16      ; wo
    s_load_dwordx4 s[8:11], s[0:1], 48
    s_load_dwordx4 s[52:55], s[0:1], 64
    """)
    if stamps: a("s_memrealtime s[76:77]")
    code_warm(a, name, 20, 23, 56)
    a(f"""
    v_and_b32 v1, 63, v0
    v_lshrrev_b32 v20, 6, v0
    v_lshlrev_b32 v2, 4, v1
    v_readfirstlane_b32 s14, v20           ; w
    s_bfe_u32 s12, s2, 0x20001
    s_lshl_b32 s12, s12, 2
    s_bfe_u32 s13, s2, 0x20003
    s_add_u32 s12, s12, s13                ; tb
    s_and_b32 s13, s2, 1
    s_lshl_b32 s13, s13, 3
    s_lshr_b32 s15, s2, 5
    s_add_u32 s13, s13, s15                ; nb
    {"s_mov_b32 s12, 0" if fake & 1 else ""}
    {"s_mov_b32 s13, 0" if fake & 2 else ""}
    v_lshrrev_b32 v20, 3, v1
    v_bfe_u32 v21, v1, 1, 2
    v_bfe_u32 v22, v1, 4, 2
    v_xor_b32 v21, v21, v22
    v_lshlrev_b32 v3, 11, v20
    v_lshl_add_u32 v3, v21, 5, v3
    v_and_b32 v21, 1, v1
    v_lshl_add_u32 v3, v21, 4, v3
    s_lshl_b32 s45, s13, 7
    s_lshl_b32 s46, s14, 16
    s_add_u32 s45, s45, s46
    v_add_u32 v3, s45, v3
    v_add_u32 v4, 16384, v3
    v_add_u32 v5, 32768, v3
    v_add_u32 v6, 49152, v3
    v_lshrrev_b32 v20, 2, v1
    v_lshlrev_b32 v20, 7, v20
    v_and_b32 v21, 3, v1
    v_lshl_add_u32 v20, v21, 3, v20
    v_bfe_u32 v21, v1, 3, 2
    """)
    for nt in range(4):
        a(f"v_xor_b32 v22, {nt}, v21")
        a(f"v_lshl_add_u32 v{7+nt}, v22, 5, v20")
        a(f"v_mov_b32 v{11+nt}, v{7+nt}")
    a(f"""
    s_and_b32 s47, s2, 31                  ; h
    s_lshr_b32 s48, s2, 5                  ; m
    s_lshl_b32 s49, s47, 15                ; h*8*4096
    s_lshl_b32 s50, s14, 10
    s_add_u32 s49, s49, s50
    s_add_u32 s49, s49, {KV_OFF}
    s_lshl_b32 s50, s47, 10                ; h*8*128
    s_and_b32 s51, s14, 1
    s_lshl_b32 s51, s51, 6
    s_add_u32 s50, s50, s51
    s_add_u32 s50, s50, {ZP_OFF}           ; z base (+m'*128)
    s_lshl_b32 s51, s2, 2                  ; (m*32+h)*4 + w
    s_add_u32 s51, s51, s14
    s_lshl_b32 s51, s51, 12
    s_add_u32 s51, s51, {PQ_OFF}
    v_and_b32 v22, 48, v1                  ; Q*16
    s_waitcnt lgkmcnt(0)
    """)
    srd(a, 32, "s54", "s55", WS_USED)
    srd(a, 16, "s8", "s9", 3584*1024*2)
    srd(a, 20, "s4", "s5", 2048*1024*2)
    srd(a, 24, "s10", "s11", 2048*1024*2)
    a("s_and_b32 s75, s7, 0xffff")
    a(f"""
    s_lshl_b32 s45, s12, 2
    s_add_u32 s45, s45, s14
    s_mul_i32 s45, s45, {HF_TG2}
    s_add_u32 s45, s45, {HF_OFF}
    s_add_u32 s28, s54, s45
    s_addc_u32 s29, s55, 0
    s_and_b32 s29, s29, 0xffff
    s_mov_b32 s30, {HF_TG2}
    s_mov_b32 s31, 0x00020000
    """)
    T = V_T
    for p in range(8):
        a(f"buffer_load_dwordx4 v[{T+4*p}:{T+4*p+3}], v2, s[32:35], s49 offen")
        if p < 7: a("s_add_u32 s49, s49, 4096")
    for p in range(8):
        a(f"buffer_load_dwordx4 v[{T+32+4*p}:{T+32+4*p+3}], v22, s[32:35], s50 offen offset:{p*128}")
    for i in range(4):
        a(f"buffer_load_dwordx4 v[{T+64+4*i}:{T+64+4*i+3}], v2, s[32:35], s51 offen offset:{i*1024}")
    a(f"""
    s_mov_b32 s36, 0                       ; W soffset
    s_lshl_b32 s60, s14, 12                ; w*4096
    s_mov_b32 s40, 0                       ; h soffset
    """)
    def dma(i): return f"buffer_load_dwordx4 v{3+i}, s[16:19], s36 offen lds"
    def hload(kk, t2):
        r = hreg(kk, t2)
        return f"buffer_load_dwordx4 a[{r}:{r+3}], v2, s[28:31], s40 offen offset:{t2*1024} {hflag}"
    for st in range(R - 2):
        for i in range(4):
            a(f"s_add_u32 m0, s60, {st*SLOT + i*1024}")
            a("s_nop 0")
            a(dma(i))
        a(f"s_add_u32 s36, s36, {128*2048}")
    ndma = 4 * (R - 2)
    a(f"s_waitcnt vmcnt({ndma + 4})")
    for base in (T, T + 32):
        for n in (4, 2, 1):
            for i in range(n):
                for hh in range(2):
                    d = base + 4 * i + 2 * hh; s2_ = base + 4 * (i + n) + 2 * hh
                    a(f"v_pk_add_f32 v[{d}:{d+1}], v[{d}:{d+1}], v[{s2_}:{s2_+1}]")
        a(f"v_cvt_pk_bf16_f32 v{base}, v{base}, v{base+1}")
        a(f"v_cvt_pk_bf16_f32 v{base+1}, v{base+2}, v{base+3}")
    SCR = R * SLOT
    a(f"""
    s_and_b32 s45, s14, 1
    s_lshr_b32 s46, s14, 1
    s_lshl_b32 s57, s45, 10
    s_lshl_b32 s46, s46, 3
    s_add_u32 s57, s57, s46
    s_add_u32 s57, s57, {SCR}
    v_add_u32 v20, s57, v2
    s_lshl_b32 s45, s45, 3
    s_add_u32 s45, s45, {SCR + 2048}
    v_add_u32 v21, s45, v2
    ds_write_b64 v20, v[{T}:{T+1}]
    ds_write_b64 v21, v[{T+32}:{T+33}]
    v_add_u32 v20, {SCR}, v2
    """)
    for kk in range(HR - 1):
        a(hload(kk, 0)); a(hload(kk, 1))
        a("s_add_u32 s40, s40, 2048")
    a("s_waitcnt lgkmcnt(0)\n s_barrier")
    for i in range(3):
        a(f"ds_read_b128 v[{T+4*i}:{T+4*i+3}], v20 offset:{i*1024}")
    a(f"""
    s_lshl_b32 s45, s48, 3
    s_lshl_b32 s46, s14, 1
    s_add_u32 s45, s45, s46
    s_mul_i32 s45, s45, {HF_TG2}
    s_lshl_b32 s46, s47, 11
    s_add_u32 s45, s45, s46
    s_add_u32 s45, s45, {HF_OFF + 112*2048}
    s_add_u32 s46, s45, {HF_TG2}
    s_waitcnt vmcnt({ndma + 2*(HR-1)}) lgkmcnt(0)
    """)
    O = T + 16
    for i in range(4):
        pq = T + 64 + 4 * i
        for f in range(3):
            d = O + 12 * i + 4 * f
            a(f"v_mfma_f32_16x16x32_bf16 v[{d}:{d+3}], v[{T+4*f}:{T+4*f+3}], v[{pq}:{pq+3}], 0")
    a(f"""
    v_and_b32 v20, 15, v1
    v_lshlrev_b32 v20, 11, v20
    v_lshrrev_b32 v19, 1, v22              ; Q*8
    v_add_u32 v19, v19, v20
    s_lshl_b32 s58, s12, 2
    s_add_u32 s58, s58, s14
    s_lshl_b32 s58, s58, 16                ; (tb*4+w)*32*2048
    s_lshl_b32 s59, s13, 7
    s_add_u32 s58, s58, s59                ; t2=0 base
    s_add_u32 s59, s58, 32768              ; t2=1 base
    """)
    for i in range(4):
        d = O + 12 * i
        a(f"v_add_f32 v{d+8}, {EPS6:#x}, v{d+8}")
        a(f"v_rcp_f32 v{d+8}, v{d+8}")
        a("s_nop 0")
        a(f"v_mov_b32 v{d+9}, v{d+8}")
        for q in range(4):
            a(f"v_pk_mul_f32 v[{d+2*q}:{d+2*q+1}], v[{d+2*q}:{d+2*q+1}], v[{d+8}:{d+9}]")
        for q in range(4):
            a(f"v_cvt_pk_bf16_f32 v{d+q}, v{d+2*q}, v{d+2*q+1}")
        a(f"buffer_store_dwordx4 v[{d}:{d+3}], v2, s[32:35], s{45 + (i>>1)} offen offset:{(i&1)*1024} sc1")
    for t2 in range(2):
        for nt in range(4):
            r = V_X + 8 * t2 + 2 * nt
            a(f"buffer_load_dwordx2 v[{r}:{r+1}], v19, s[20:23], s{58+t2} offen offset:{nt*32}")
    for L in range(32): a(f"v_mov_b32 v{V_ACC+L}, 0")
    a(f"""
    s_mov_b32 s41, {(R-1)*SLOT}
    s_mov_b32 s42, 0
    s_mov_b32 s43, {SLOT}
    s_add_u32 s61, s60, {(R-2)*SLOT}
    s_mov_b32 s44, 0                       ; iteration
    s_mov_b32 s37, {R-2}
    v_mov_b32 v21, 0
    """)
    for i in range(2):
        a(f"s_add_u32 m0, s61, {i*1024}\n s_nop 0")
        a(dma(i))
    n_after = 2 * (HR - 1 - 2) + 4 + 8 + 2
    a(f"s_waitcnt vmcnt({n_after})\n s_barrier")
    def trreads(ksub, st, bset):
        out = []
        for nt in range(4):
            r = wreg(st, nt); b = 11 + 4 * bset + nt
            out.append(f"ds_read_b64_tr_b16 v[{r}:{r+1}], v{b} offset:{ksub*4096}")
            out.append(f"ds_read_b64_tr_b16 v[{r+2}:{r+3}], v{b} offset:{ksub*4096+2048}")
        return out
    for ins in trreads(0, 0, 0): a(ins)
    for ins in trreads(1, 1, 0): a(ins)
    if stamps: a("s_memtime s[62:63]\n s_memrealtime s[64:65]")
    NB = min(12 * (R - 3), 33)
    a.raw(".p2align 6")
    a.label(f"{name}_loop")
    a(f"""
    s_cmp_eq_u32 s44, 5
    s_cbranch_scc0 {name}_np
    s_lshr_b32 s45, s12, 1
    s_lshl_b32 s45, s45, 5
    v_mov_b32 v21, s45
    global_load_dword v22, v21, s[52:53] sc1
    """)
    a.label(f"{name}_np")
    a(f"""
    s_cmp_eq_u32 s44, 6
    s_cbranch_scc0 {name}_nc
    """)
    a.label(f"{name}_chk")
    a(f"""
    v_readfirstlane_b32 s45, v22
    s_cmp_ge_u32 s45, 32
    s_cbranch_scc1 {name}_nc
    s_sleep 8
    global_load_dword v22, v21, s[52:53] sc1
    s_waitcnt vmcnt(0)
    s_branch {name}_chk
    """)
    a.label(f"{name}_nc")
    a(f"""
    s_cmp_eq_u32 s44, 7
    s_cbranch_scc0 {name}_ns
    s_nop 7
    """)
    for L in range(32): a(f"v_mov_b32 v{V_SAV+L}, v{V_ACC+L}")
    for L in range(32): a(f"v_mov_b32 v{V_ACC+L}, 0")
    a("s_nop 1")
    a.label(f"{name}_ns")
    for kk in range(HR):
        st = kk >> 2; ksub = kk & 3; bs = st & 1
        if ksub == 2:
            a(f"s_waitcnt vmcnt({NB}) lgkmcnt(8)")
            a("s_barrier")
        else:
            a("s_waitcnt lgkmcnt(8)")
        if kk == HR - 2:
            a(f"""
            s_add_u32 s45, s44, s14
            s_cmp_eq_u32 s45, 0
            s_cbranch_scc0 {name}_nsig
            s_lshl_b32 s45, s48, 5
            v_mov_b32 v20, s45
            v_mov_b32 v22, 1
            s_mov_b64 exec, 1
            global_atomic_add v20, v22, s[52:53] sc1
            s_mov_b64 exec, -1
            """)
            a.label(f"{name}_nsig")
        rd = trreads((ksub + 2) & 3, (kk + 2) & 3, bs if ksub < 2 else bs ^ 1)
        fill = [[] for _ in range(8)]
        for g in range(8): fill[g].append(rd[g])
        fill[0].append(hload(kk - 1, 0))
        fill[1].append(hload(kk - 1, 1))
        fill[2].append("s_add_u32 s40, s40, 2048")
        di = (ksub + 2) & 3
        if ksub == 1:
            fill[7].append("s_add_u32 s61, s41, s60")
            fill[7].append(f"s_add_u32 s36, s36, {128*2048}")
        if ksub == 2:
            fill[3].append("s_add_u32 s37, s37, 1")
            fill[4].append("s_cmp_eq_u32 s37, 28")
            fill[4].append("s_cselect_b32 s16, s6, s16")
            fill[4].append("s_cselect_b32 s17, s75, s17")
            fill[4].append(f"s_cselect_b32 s18, {1024*1024*2}, s18")
            fill[4].append("s_cselect_b32 s36, 0, s36")
        fill[5].append(f"s_add_u32 m0, s61, {di*1024}")
        fill[6].append(dma(di))
        if ksub == 0:
            nb_ = 11 + 4 * (bs ^ 1)
            fill[3].append(f"v_add_u32 v{nb_+0}, s43, v7")
            fill[4].append(f"v_add_u32 v{nb_+1}, s43, v8")
            fill[7].append(f"v_add_u32 v{nb_+2}, s43, v9")
        if ksub == 1:
            nb_ = 11 + 4 * (bs ^ 1)
            fill[3].append(f"v_add_u32 v{nb_+3}, s43, v10")
        if ksub == 3:
            fill[3].append("s_mov_b32 s41, s42")
            fill[4].append("s_mov_b32 s42, s43")
            fill[7].append(f"s_add_u32 s43, s43, {SLOT}")
            fill[7].append(f"s_cmp_ge_u32 s43, {R*SLOT}")
            fill[7].append(f"s_cselect_b32 s43, 0, s43")
        g = 0
        for nt in range(4):
            for t2 in ((0, 1) if nt % 2 == 0 else (1, 0)):
                w = wreg(kk & 3, nt); hh = hreg(kk, t2); d = areg(nt, t2)
                a(f"v_mfma_f32_16x16x32_bf16 v[{d}:{d+3}], v[{w}:{w+3}], a[{hh}:{hh+3}], v[{d}:{d+3}]")
                for ins in fill[g]: a(ins)
                g += 1
    a(f"""
    s_add_u32 s44, s44, 1
    s_cmp_lt_u32 s44, 9
    s_cbranch_scc1 {name}_loop
    """)
    if stamps: a("s_memtime s[66:67]\n s_memrealtime s[68:69]")
    a(f"""
    s_mov_b32 s48, {NLOG2E:#x}
    s_mov_b32 s49, {NLOG2E:#x}
    s_nop 7
    """)
    def rnd(r):
        a(f"v_cvt_pk_bf16_f32 v{r+1}, v{r}, v{r+1}")
        a(f"v_lshlrev_b32 v{r}, 16, v{r+1}")
        a(f"v_and_b32 v{r+1}, 0xffff0000, v{r+1}")
    for t2 in range(2):
        for nt in range(4):
            s_ = areg(nt, t2); y = s_ - V_ACC + V_SAV; xr = V_X + 8 * t2 + 2 * nt
            e = V_T
            for p in range(2): rnd(y + 2*p); rnd(s_ + 2*p)
            for p in range(2): a(f"v_pk_mul_f32 v[{e+2*p}:{e+2*p+1}], v[{y+2*p}:{y+2*p+1}], s[48:49]")
            for k in range(4): a(f"v_exp_f32 v{e+k}, v{e+k}")
            a("s_nop 0")
            for p in range(2): a(f"v_pk_add_f32 v[{e+2*p}:{e+2*p+1}], v[{e+2*p}:{e+2*p+1}], 1.0 op_sel_hi:[1,0]")
            for k in range(4): a(f"v_rcp_f32 v{e+k}, v{e+k}")
            a("s_nop 0")
            for p in range(2): a(f"v_pk_mul_f32 v[{y+2*p}:{y+2*p+1}], v[{y+2*p}:{y+2*p+1}], v[{e+2*p}:{e+2*p+1}]")
            for p in range(2): rnd(y + 2*p)
            for p in range(2): a(f"v_pk_mul_f32 v[{y+2*p}:{y+2*p+1}], v[{y+2*p}:{y+2*p+1}], v[{s_+2*p}:{s_+2*p+1}]")
            for p in range(2): rnd(y + 2*p)
            for p in range(2):
                a(f"v_lshlrev_b32 v{e+2*p}, 16, v{xr+p}")
                a(f"v_and_b32 v{e+2*p+1}, 0xffff0000, v{xr+p}")
            for p in range(2): a(f"v_pk_add_f32 v[{y+2*p}:{y+2*p+1}], v[{y+2*p}:{y+2*p+1}], v[{e+2*p}:{e+2*p+1}]")
            for p in range(2): a(f"v_cvt_pk_bf16_f32 v{xr+p}, v{y+2*p}, v{y+2*p+1}")
            a(f"buffer_store_dwordx2 v[{xr}:{xr+1}], v19, s[24:27], s{58+t2} offen offset:{nt*32}")
    if stamps:
        a(f"""
        s_waitcnt vmcnt(0)
        s_memtime s[70:71]
        s_memrealtime s[72:73]
        s_waitcnt lgkmcnt(0)
        s_sub_u32 s66, s66, s62
        s_sub_u32 s70, s70, s62
        v_mov_b32 v4, s76
        v_mov_b32 v5, s64
        v_mov_b32 v6, s68
        v_mov_b32 v7, s72
        v_mov_b32 v10, s66
        v_mov_b32 v11, s70
        v_lshlrev_b32 v8, 4, v0
        s_lshl_b32 s45, s2, 12
        s_add_u32 s45, s45, {34<<20}
        buffer_store_dwordx4 v[4:7], v8, s[32:35], s45 offen
        s_add_u32 s45, s45, {1<<20}
        buffer_store_dwordx2 v[10:11], v8, s[32:35], s45 offen
        """)
    a.label(f"{name}_end")
    a("s_endpgm")
    a.label(f"{name}_codeend")
    return a.text(), 256 + 128, 80, 256, max(R * SLOT + 4096, 84 * 1024)

QB, GB, DB, OB = 1024*3072*2, 1024*3584*2, 3584*1024*2, 1024*1024*2
PF_ALL = [(8, 0, QB), (32, 0, GB), (40, 0, GB), (48, 0, DB), (16, 0, OB)]
PF_K1 = PF_ALL[:3]
def build(XR=4, R=5, stamps=False, R2=6, pf_stride=128, pf="L0", L0=256, pf1=True, **kw2):
    pfl = {"all": PF_ALL, "k1": PF_K1, "none": [], "L0": [(8, 0, L0*6144), (32, 0, L0*7168), (40, 0, L0*7168)]}[pf]
    k0, v0, s0, a0 = gen_ln("ln_kernel", stamps, pf_stride, pfl)
    k1, v1, s1, a1, lds1 = gen_gemm1("gemm1_kernel", XR, R, stamps, L0, pf1)
    k2, v2, s2, a2, lds2 = gen_gemm2("gemm2_kernel", R2, stamps, **kw2)
    launches = [("ln_kernel", 256, 256, 1024), ("gemm1_kernel", 256, 256, lds1), ("gemm2_kernel", 256, 256, lds2)]
    kernels = [("ln_kernel", k0, v0, s0, a0), ("gemm1_kernel", k1, v1, s1, a1), ("gemm2_kernel", k2, v2, s2, a2)]
    return assemble_file(launches, kernels)

if __name__ == "__main__":
    open("k_stamps.s", "w").write(build(stamps=True))
    open("recurrent_scan__linear_attn_block__swiglu_ffn__prompt.s", "w").write(build())
```

```python
import sys
from asmlib import *

XF_OFF  = 0
KV_OFF  = 4 << 20
ZP_OFF  = 5 << 20
FL_OFF  = (5 << 20) + (512 << 10)
FL_LN, FL_KV, FL_H, FL_O = FL_OFF, FL_OFF + 32768, FL_OFF + 65536, FL_OFF + 98304
FL_Y    = FL_OFF + 131072
EPOCH   = FL_OFF + 262144
YX_OFF  = 6 << 20
HF_OFF  = 16 << 20
ST_OFF  = 34 << 20
WS_USED = 40 << 20
HF_TG2  = 144 * 2048
LOG2E, NLOG2E, EPS6, EPS5 = 0x3fb8aa3b, 0xbfb8aa3b, 0x358637bd, 0x3727c5ac
QB, GB, DB, OB, XB = 1024*3072*2, 1024*3584*2, 3584*1024*2, 1024*1024*2, 2048*1024*2
SCR = 128 * 1024
LDS_BYTES = SCR + 24 * 1024
KN = "recurrent_scan__linear_attn_block__swiglu_ffn__prompt_kernel"

def srd(a, d, lo, hi, nbytes):
    a(f"""
    s_mov_b32 s{d}, {lo}
    s_and_b32 s{d+1}, {hi}, 0xffff
    s_mov_b32 s{d+2}, {nbytes}
    s_mov_b32 s{d+3}, 0x00020000
    """)

def srd_off(a, d, lo, hi, soff, nbytes):
    a(f"""
    s_add_u32 s{d}, {lo}, {soff}
    s_addc_u32 s{d+1}, {hi}, 0
    s_and_b32 s{d+1}, s{d+1}, 0xffff
    s_mov_b32 s{d+2}, {nbytes}
    s_mov_b32 s{d+3}, 0x00020000
    """)

def gen(name=KN, stamps=False, L0=192, psleep=1, xflag='sc1', pos={}, clk=0, abl2=0, fine=()):
    a = Asm()
    XR, R, SLOT = 4, 5, 20480
    NV, VB = 58, 24
    A_W, A_X = 0, 40
    A_ACC = A_X + 16 * XR
    A_END = A_ACC + (80 - NV) * 4
    def accr(ct, tt):
        L = ct * 4 + tt
        if 6 <= ct < 13: L = 24 + tt * 7 + (ct - 6)
        return ("v", VB + 4 * L) if L < NV else ("a", A_ACC + 4 * (L - NV))
    def acc(ct, tt):
        f, r = accr(ct, tt); return f"{f}[{r}:{r+3}]"
    def wfrag(c): return A_W + 4 * (c % 10)
    def xfrag(u, tt): return A_X + 16 * (u % XR) + 4 * tt
    stamp_names = []
    def stamp(nm):
        if not stamps: return
        i = len(stamp_names); stamp_names.append(nm)
        op = "s_memtime" if clk else "s_memrealtime"
        if i == 0: a(f"{op} s[90:91]")
        else:
            a(f"{op} s[100:101]\n s_waitcnt lgkmcnt(0)")
            if i == 1: a("v_writelane_b32 v0, s90, 0")
            a(f"v_writelane_b32 v0, s100, {i}")
    def flag_store(soff, vt, lbl, wave0=True):
        if wave0: a(f"s_cmp_eq_u32 s3, 0\n s_cbranch_scc0 {lbl}")
        a(f"""
        v_mov_b32 v{vt}, s92
        v_mov_b32 v{vt+1}, s93
        s_mov_b64 exec, 1
        buffer_store_dwordx2 v[{vt}:{vt+1}], v16, s[40:43], s{soff} offen sc0 sc1
        s_mov_b64 exec, -1
        """)
        if wave0: a.label(lbl)
    def poll_load(vp, vidx, soff):
        return f"buffer_load_dwordx2 v[{vp}:{vp+1}], v{vidx}, s[40:43], s{soff} offen sc0 sc1"
    def poll_check(vp, vidx, soff, lbl):
        return f"""s_mov_b32 s82, 0
        {lbl}:
        v_xor_b32 v{vp}, s92, v{vp}
        v_xor_b32 v{vp+1}, s93, v{vp+1}
        v_or_b32 v{vp}, v{vp}, v{vp+1}
        v_cmp_ne_u32 vcc, 0, v{vp}
        s_cbranch_vccz {lbl}_ok
        {"s_sleep " + str(psleep) if psleep else ""}
        {poll_load(vp, vidx, soff)}
        s_add_u32 s82, s82, 1
        s_cmp_lt_u32 s82, 0x40000
        s_waitcnt vmcnt(0)
        s_cbranch_scc1 {lbl}
        {lbl}_ok:"""
    def poll_wave0(vp, vidx, soff, lbl):
        a(f"s_cmp_eq_u32 s3, 0\n s_cbranch_scc0 {lbl}_skip")
        a(poll_load(vp, vidx, soff))
        a("s_waitcnt vmcnt(0)")
        a(poll_check(vp, vidx, soff, lbl))
        a.label(lbl + "_skip")

    a(f"""
    s_cmp_ge_u32 s2, 256
    s_cbranch_scc1 {name}_end
    s_load_dwordx4 s[4:7], s[0:1], 0
    s_load_dwordx2 s[8:9], s[0:1], 16
    s_load_dwordx4 s[12:15], s[0:1], 32
    s_load_dwordx4 s[16:19], s[0:1], 48
    s_load_dwordx4 s[20:23], s[0:1], 64
    """)
    stamp("start")
    a(f"""
    s_getpc_b64 s[76:77]
    v_lshlrev_b32 v17, 7, v0
    v_min_u32 v17, {name}_codeend-{name}-64, v17
    global_load_dword v23, v17, s[76:77]
    v_and_b32 v1, 63, v0
    v_lshrrev_b32 v3, 6, v0
    v_lshlrev_b32 v16, 4, v1
    v_readfirstlane_b32 s3, v3
    v_and_b32 v24, 7, v0
    v_bfe_u32 v25, v0, 3, 3
    v_lshlrev_b32 v26, 11, v24
    v_lshl_add_u32 v26, v25, 4, v26
    v_lshl_add_u32 v26, v3, 9, v26
    s_lshl_b32 s75, s2, 14
    s_waitcnt lgkmcnt(0)
    """)
    srd(a, 32, "s4", "s5", XB)
    for i in range(4):
        a(f"buffer_load_dwordx4 v[{32+4*i}:{35+4*i}], v26, s[32:35], s75 offen offset:{128*i}")
    a(f"""
    s_add_u32 s94, s22, {EPOCH}
    s_addc_u32 s95, s23, 0
    s_load_dword s92, s[94:95], 0
    """)
    srd(a, 44, "s12", "s13", GB)
    srd(a, 48, "s14", "s15", GB)
    srd(a, 52, "s6", "s7", QB)
    a("v_lshlrev_b32 v17, 7, v0")
    n_early = 0
    for (sr, pitch) in ((44, 7168), (48, 7168), (52, 6144)):
        chunk = -(-L0 * pitch // (256 * 128)) * 128
        assert chunk <= 256 * 128
        a(f"s_mul_i32 s75, s2, {chunk}")
        a(f"v_min_u32 v18, {chunk-128}, v17")
        a(f"buffer_load_dword v23, v18, s[{sr}:{sr+3}], s75 offen")
        n_early += 1
    a(f"""
    v_lshlrev_b32 v27, 15, v3
    v_lshrrev_b32 v28, 2, v25
    v_lshl_add_u32 v27, v28, 12, v27
    v_and_b32 v28, 3, v25
    v_lshl_add_u32 v27, v28, 8, v27
    v_lshl_add_u32 v27, v24, 4, v27
    ; lds: write v28 = SCR + r*64 + w*16 + ((l>>4)&3)*4 ; read v29 = SCR + r*64
    v_lshlrev_b32 v29, 6, v24
    v_add_u32 v29, {SCR}, v29
    v_bfe_u32 v28, v0, 4, 2
    v_lshl_add_u32 v28, v28, 2, v29
    v_lshl_add_u32 v28, v3, 4, v28
    s_lshr_b32 s78, s2, 3
    s_lshl_b32 s78, s78, 17
    s_bfe_u32 s79, s2, 0x20001
    s_lshl_b32 s79, s79, 10
    s_add_u32 s78, s78, s79
    s_and_b32 s79, s2, 1
    s_lshl_b32 s79, s79, 7
    s_add_u32 s78, s78, s79
    s_add_u32 s79, s78, 8192
    s_add_u32 s80, s78, 16384
    s_add_u32 s81, s78, 24576
    ; ---- G1 coords
    s_and_b32 s10, s2, 7
    s_lshl_b32 s10, s10, 2
    s_bfe_u32 s11, s2, 0x20003
    s_add_u32 s10, s10, s11          ; j
    s_lshr_b32 s11, s2, 5            ; m
    s_mul_i32 s82, s3, 5
    s_movk_i32 s83, 4682
    """)
    srd(a, 40, "s22", "s23", WS_USED)
    for i in range(5):
        a(f"""
        s_add_u32 s84, s82, {i}
        s_cmp_lt_u32 s84, 13
        s_cselect_b32 s85, 6, 13
        s_cmp_lt_u32 s84, 6
        s_cselect_b32 s85, 0, s85
        s_cselect_b32 s86, 5462, s83
        s_cselect_b32 s87, 12, 14
        v_mov_b32 v21, s86
        s_cselect_b32 s88, 2048, 64
        s_cselect_b32 s89, 2, 0
        s_cselect_b32 s86, 64, 224
        s_sub_u32 s84, s84, s85
        s_lshl_b32 s85, s87, 9
        s_lshl_b32 s84, s84, 6
        s_mul_i32 s86, s86, s10
        v_add_u32 v17, s84, v1
        v_mul_u32_u24 v18, v21, v17
        v_lshrrev_b32 v18, 16, v18
        v_mul_u32_u24 v19, s87, v18
        v_sub_u32 v17, v17, v19
        v_lshrrev_b32 v19, 1, v18
        v_and_b32 v19, s89, v19
        v_xor_b32 v17, v17, v19
        v_and_b32 v19, 3, v18
        v_bfe_u32 v20, v18, 4, 1
        v_lshl_or_b32 v19, v20, 2, v19
        v_bfe_u32 v20, v18, 2, 2
        v_lshl_or_b32 v19, v20, 3, v19
        v_mul_u32_u24 v19, s85, v19
        v_lshrrev_b32 v20, 2, v17
        v_mul_u32_u24 v20, s88, v20
        v_and_b32 v17, 3, v17
        v_lshl_add_u32 v20, v17, 4, v20
        v_add3_u32 v{2+i}, v19, v20, s86
        """)
    a(f"""
    v_bfe_u32 v17, v1, 2, 4
    v_and_b32 v18, 3, v1
    v_lshlrev_b32 v18, 3, v18
    v_mul_u32_u24 v9, 224, v17
    v_add_u32 v9, v9, v18
    v_mul_u32_u24 v7, 192, v17
    v_add_u32 v7, v7, v18
    v_bfe_u32 v19, v1, 4, 1
    v_lshlrev_b32 v19, 5, v19
    v_sub_u32 v8, v7, v19
    v_add_u32 v7, v7, v19
    v_mov_b32 v10, v7
    v_mov_b32 v11, v8
    v_mov_b32 v12, v9
    s_lshl_b32 s84, s2, 2
    s_add_u32 s84, s84, s3
    s_lshl_b32 s73, s84, 10
    s_add_u32 s71, s73, {L0*7168}
    s_add_u32 s72, s73, {L0*6144}
    s_mov_b32 s74, s73
    s_waitcnt lgkmcnt(0)
    s_add_u32 s92, s92, 1
    s_not_b32 s93, s92
    """)
    for i in range(4):
        a(f"s_waitcnt vmcnt({3-i+n_early})")
        for d in range(4):
            s = 32 + 4*i + d
            a(f"v_lshlrev_b32 v{48+2*(4*i+d)}, 16, v{s}")
            a(f"v_and_b32 v{49+2*(4*i+d)}, 0xffff0000, v{s}")
    def tree(src, tmp):
        for i in range(8):
            a(f"v_pk_add_f32 v[{tmp+2*i}:{tmp+2*i+1}], v[{src+4*i}:{src+4*i+1}], v[{src+4*i+2}:{src+4*i+3}]")
        for n in (4, 2, 1):
            for i in range(n):
                a(f"v_pk_add_f32 v[{tmp+2*i}:{tmp+2*i+1}], v[{tmp+2*i}:{tmp+2*i+1}], v[{tmp+2*(i+n)}:{tmp+2*(i+n)+1}]")
        a(f"v_add_f32 v{tmp}, v{tmp}, v{tmp+1}")
    def wg_reduce(tmp, ldsoff):
        a(f"""
        s_nop 1
        v_add_f32_dpp v{tmp}, v{tmp}, v{tmp} row_ror:8 row_mask:0xf bank_mask:0xf
        ds_write_b32 v28, v{tmp} offset:{ldsoff}
        s_waitcnt lgkmcnt(0)
        s_barrier
        """)
        for i in range(4):
            a(f"ds_read_b128 v[{tmp+4*i}:{tmp+4*i+3}], v29 offset:{ldsoff+16*i}")
        a("s_waitcnt lgkmcnt(0)")
        for n in (4, 2, 1):
            for i in range(n):
                a(f"v_pk_add_f32 v[{tmp+2*i}:{tmp+2*i+1}], v[{tmp+2*i}:{tmp+2*i+1}], v[{tmp+2*(i+n)}:{tmp+2*(i+n)+1}]")
        a(f"v_add_f32 v{tmp}, v{tmp}, v{tmp+1}")
    tree(48, 80)
    wg_reduce(80, 0)
    a("v_mul_f32 v24, 0x3a800000, v80\n v_mov_b32 v25, v24")
    for i in range(16):
        a(f"v_pk_add_f32 v[{96+2*i}:{97+2*i}], v[{48+2*i}:{49+2*i}], v[24:25] neg_lo:[0,1] neg_hi:[0,1]")
    for i in range(16):
        a(f"v_pk_mul_f32 v[{96+2*i}:{97+2*i}], v[{96+2*i}:{97+2*i}], v[{96+2*i}:{97+2*i}]")
    tree(96, 80)
    wg_reduce(80, 512)
    a(f"""
    v_mul_f32 v30, 0x3a800000, v80
    v_cvt_pk_bf16_f32 v31, v24, v30
    v_lshlrev_b32 v24, 16, v31
    v_and_b32 v30, 0xffff0000, v31
    v_add_f32 v30, {EPS5:#x}, v30
    v_cvt_pk_bf16_f32 v30, v30, v30
    v_and_b32 v30, 0xffff0000, v30
    v_sqrt_f32 v30, v30
    s_nop 0
    v_cvt_pk_bf16_f32 v30, v30, v30
    v_and_b32 v30, 0xffff0000, v30
    v_rcp_f32 v30, v30
    v_mov_b32 v25, v24
    s_nop 0
    v_mov_b32 v31, v30
    """)
    for i in range(4):
        for d in range(4):
            k = 4*i + d
            a(f"v_pk_add_f32 v[{48+2*k}:{49+2*k}], v[{48+2*k}:{49+2*k}], v[24:25] neg_lo:[0,1] neg_hi:[0,1]")
        for d in range(4):
            k = 4*i + d
            a(f"v_cvt_pk_bf16_f32 v{32+k}, v{48+2*k}, v{49+2*k}")
        for d in range(4):
            k = 4*i + d
            a(f"v_lshlrev_b32 v{48+2*k}, 16, v{32+k}")
            a(f"v_and_b32 v{49+2*k}, 0xffff0000, v{32+k}")
        for d in range(4):
            k = 4*i + d
            a(f"v_pk_mul_f32 v[{48+2*k}:{49+2*k}], v[{48+2*k}:{49+2*k}], v[30:31]")
        for d in range(4):
            k = 4*i + d
            a(f"v_cvt_pk_bf16_f32 v{32+k}, v{48+2*k}, v{49+2*k}")
        a(f"buffer_store_dwordx4 v[{32+4*i}:{35+4*i}], v27, s[40:43], s{78+i} offen sc1")
    stamp("lnstore")
    def sel_srd(d, w_gate_from, w_up_from):
        a(f"""
        s_cmp_lt_u32 s3, {w_up_from}
        s_cselect_b32 s{d}, s12, s14
        s_cselect_b32 s{d+1}, s13, s15
        s_cmp_lt_u32 s3, {w_gate_from}
        s_cselect_b32 s{d}, s6, s{d}
        s_cselect_b32 s{d+1}, s7, s{d+1}
        s_cselect_b32 s{d+2}, {QB}, s84
        s_and_b32 s{d+1}, s{d+1}, 0xffff
        s_mov_b32 s{d+3}, 0x00020000
        """)
    a(f"s_mov_b32 s84, {GB}")
    sel_srd(24, 2, 3); sel_srd(28, 1, 3); sel_srd(32, 1, 2)
    a(f"""
    s_mov_b32 s84, {32*7168}
    s_cmp_lt_u32 s3, 2
    s_cselect_b32 s62, {32*6144}, s84
    s_cmp_lt_u32 s3, 1
    s_cselect_b32 s63, {32*6144}, s84
    s_mov_b32 s60, 0
    s_mov_b32 s61, 0
    s_mov_b32 s64, 0
    s_mul_i32 s69, s3, 5120
    s_lshl_b32 s84, s11, 2
    s_add_u32 s84, s84, s3
    s_lshl_b32 s84, s84, 17
    """)
    srd_off(a, 36, "s22", "s23", "s84", 131072)
    srd(a, 56, "s16", "s17", DB)
    srds = [24, 28, 28, 32, 32]; offs = [60, 61, 61, 61, 61]
    def dma(i): return f"buffer_load_dwordx4 v{2+i}, s[{srds[i]}:{srds[i]+3}], s{offs[i]} offen lds"
    def xload(u, tt):
        r = xfrag(u, tt)
        return f"buffer_load_dwordx4 a[{r}:{r+3}], v16, s[36:39], s64 offen offset:{tt*1024} {xflag}"
    TS = [71, 71, 72, 74]
    def touch(pu): return f"buffer_load_dword v23, v16, s[{44+4*pu}:{47+4*pu}], s{TS[pu]} offen"
    for L in range(NV * 4): a(f"v_mov_b32 v{VB+L}, 0")
    for L in range((80 - NV) * 4): a(f"v_accvgpr_write_b32 a{A_ACC+L}, 0")
    a(f"""
    s_lshl_b32 s84, s2, 7
    s_add_u32 s84, s84, {FL_LN}
    s_lshl_b32 s85, s11, 12
    s_add_u32 s85, s85, {FL_LN}
    v_and_b32 v17, 31, v1
    v_lshlrev_b32 v17, 7, v17
    s_waitcnt vmcnt(0)
    s_barrier
    """)
    flag_store(84, 18, f"{name}_sig0")
    stamp("lnsig")
    srd(a, 76, "s22", "s23", 0)
    DUMMY = "buffer_load_dword v23, v16, s[76:79], 0 offen"
    vm = []
    def after(tags):
        last = max(i for i, t in enumerate(vm) if t in tags)
        return len(vm) - 1 - last
    for st in range(R - 1):
        for i in range(5):
            a(f"s_add_u32 m0, s69, {st*SLOT + i*1024}\n s_nop 0")
            a(dma(i)); vm.append(("d", st))
        a("s_add_u32 s60, s60, s62\n s_add_u32 s61, s61, s63")
    poll_wave0(20, 17, 85, f"{name}_poll0")
    a("s_barrier")
    stamp("lnpoll")
    for st in range(XR - 1):
        for tt in range(4): a(xload(st, tt)); vm.append(("x", st))
        a("s_add_u32 s64, s64, 4096")
        a(touch(st)); vm.append(("t", st))
        if st != 0: a(f"s_add_u32 s{TS[st]}, s{TS[st]}, {1<<20}")
        for i in range(5): a(DUMMY); vm.append(("n", 0))
    a(f"""
    s_mov_b32 s65, {(R-1)*SLOT}
    s_mov_b32 s66, 0
    s_mov_b32 s67, {SLOT}
    s_mov_b32 s68, 0
    s_and_b32 s89, s9, 0xffff
    s_waitcnt vmcnt({after([("d",0),("x",0)])})
    s_barrier
    """)
    def trreads(c, bset):
        b = 10 + 3 * bset; r = wfrag(c)
        if c < 6:
            base = b + (c & 1); off = c * 32; step = 16 * 192
        else:
            base = b + 2; u = 1 if c >= 13 else 0; t = c - (13 if u else 6)
            off = 6144 + u * 7168 + t * 32; step = 16 * 224
        return [f"ds_read_b64_tr_b16 a[{r}:{r+1}], v{base} offset:{off}",
                f"ds_read_b64_tr_b16 a[{r+2}:{r+3}], v{base} offset:{off+step}"]
    for c in range(9):
        for ins in trreads(c, 0): a(ins)
    a("s_waitcnt lgkmcnt(8)")
    stamp("loop1")
    NBs = [63] * XR
    for s in range(32):
        u = s % XR
        for tt in range(4): vm.append(("x", s + XR - 1))
        vm.append(("t", s + 100))
        NBs[u] = min(NBs[u], after([("d", s + 1), ("x", s + 1)]))
        for i in range(5): vm.append(("d", s + R - 1))
    a.raw(".p2align 6")
    a.label(f"{name}_loop1")
    for u in range(XR):
        bs = u & 1
        gaps = {}
        def put(c, g, ins): gaps.setdefault((c, g), []).append(ins)
        for c in range(20):
            cn = c + 9
            rd = trreads(cn, bs) if cn < 20 else trreads(cn - 20, bs ^ 1)
            put(c, 0, rd[0]); put(c, 1, rd[1])
        for tt in range(4): put(tt, 2, xload(u - 1, tt))
        put(4, 2, "s_add_u32 s64, s64, 4096")
        put(4, 3, touch(u))
        if u != 0: put(7, 2, f"s_add_u32 s{TS[u]}, s{TS[u]}, {1<<20}")
        if u == 2:
            put(11, 2, f"s_cmp_ge_u32 s72, {QB}")
            put(11, 2, f"s_cselect_b32 s52, s8, s52")
            put(11, 2, f"s_cselect_b32 s53, s89, s53")
            put(15, 2, f"s_cmp_ge_u32 s72, {QB}")
            put(15, 2, f"s_cselect_b32 s54, {OB}, s54")
            put(15, 2, f"s_cselect_b32 s72, s73, s72")
        nb = 10 + 3 * (bs ^ 1)
        put(5, 2, f"v_add_u32 v{nb}, s67, v7")
        put(5, 3, f"v_add_u32 v{nb+1}, s67, v8")
        put(6, 2, f"v_add_u32 v{nb+2}, s67, v9")
        put(6, 3, "s_add_u32 s70, s65, s69")
        for c in (3, 7, 11, 15, 19): put(c, 3, "s_waitcnt lgkmcnt(8)")
        put(10, 2, f"s_waitcnt vmcnt({NBs[u]})")
        put(10, 3, "s_barrier")
        dpos = [12, 13, 14, 16, 17]
        for i in range(5):
            put(dpos[i], 2, f"s_add_u32 m0, s70, {i*1024}")
            put(dpos[i], 3, dma(i))
        put(18, 2, "s_add_u32 s60, s60, s62")
        put(18, 3, "s_add_u32 s61, s61, s63")
        put(8, 2, "s_mov_b32 s65, s66")
        put(8, 3, "s_mov_b32 s66, s67")
        put(9, 2, f"s_add_u32 s67, s67, {SLOT}")
        put(9, 3, f"s_cmp_ge_u32 s67, {R*SLOT}")
        put(9, 3, f"s_cselect_b32 s67, 0, s67")
        if u == XR - 1:
            put(19, 1, "s_add_u32 s68, s68, 1")
            put(19, 2, "s_cmp_lt_u32 s68, 8")
        for c in range(20):
            tts = [0, 1, 2, 3] if c % 2 == 0 else [3, 2, 1, 0]
            w = wfrag(c)
            for g, tt in enumerate(tts):
                x = xfrag(u, tt)
                A, B = (f"a[{w}:{w+3}]", f"a[{x}:{x+3}]")
                if 2 <= c < 6: A, B = B, A
                a(f"v_mfma_f32_16x16x32_bf16 {acc(c,tt)}, {A}, {B}, {acc(c,tt)}")
                for ins in gaps.get((c, g), []): a(ins)
    a(f"s_cbranch_scc1 {name}_loop1")
    stamp("loop1end")

    S2, R2, HR = 16384, 8, 14
    a(f"""
    s_mov_b32 s44, {LOG2E:#x}
    s_mov_b32 s45, {LOG2E:#x}
    s_mov_b32 s46, {NLOG2E:#x}
    s_mov_b32 s47, {NLOG2E:#x}
    s_mov_b32 s48, {EPS6:#x}
    s_mov_b32 s49, {EPS6:#x}
    s_and_b32 s63, s2, 1
    s_bfe_u32 s50, s2, 0x10002
    s_lshl_b32 s50, s50, 3
    s_bfe_u32 s51, s2, 0x30003
    s_add_u32 s50, s50, s51
    s_bfe_u32 s51, s2, 0x10001
    s_lshl_b32 s51, s51, 2
    s_lshr_b32 s52, s2, 6
    s_add_u32 s51, s51, s52
    v_lshrrev_b32 v17, 4, v1
    v_bfe_u32 v18, v1, 1, 3
    v_xor_b32 v18, v18, v17
    s_lshl_b32 s52, s63, 2
    v_xor_b32 v18, s52, v18
    v_lshlrev_b32 v19, 11, v17
    v_and_b32 v20, 1, v1
    v_lshl_add_u32 v19, v20, 4, v19
    s_lshl_b32 s52, s3, 15
    s_lshl_b32 s53, s51, 8
    s_add_u32 s52, s52, s53
    v_add_u32 v19, s52, v19
    v_lshl_add_u32 v10, v18, 5, v19
    v_xor_b32 v18, 4, v18
    v_lshl_add_u32 v11, v18, 5, v19
    v_add_u32 v11, 8192, v11
    v_add_u32 v12, 16384, v10
    v_add_u32 v13, 16384, v11
    s_mul_i32 s60, s63, {56*32*2048}
    s_lshl_b32 s69, s3, 12
    s_lshl_b32 s59, s11, 3
    s_lshl_b32 s52, s3, 1
    s_add_u32 s59, s59, s52
    s_mul_i32 s59, s59, {HF_TG2}
    s_add_u32 s59, s59, {HF_OFF}
    s_mul_i32 s52, s10, 7
    s_lshr_b32 s52, s52, 1
    s_lshl_b32 s52, s52, 11
    s_add_u32 s61, s59, s52
    s_and_b32 s62, s10, 1
    v_add_u32 v17, 8, v16
    s_getpc_b64 s[80:81]
    v_lshlrev_b32 v14, 7, v1
    s_lshl_b32 s52, s3, 13
    v_add_u32 v14, s52, v14
    v_min_u32 v14, {name}_codeend-{name}_g1end-64, v14
    s_waitcnt vmcnt(0) lgkmcnt(0)
    s_barrier
    """)
    a.label(f"{name}_g1end")
    a("global_load_dword v23, v14, s[80:81]")
    srd(a, 24, "s16", "s17", DB)
    srd(a, 28, "s8", "s9", OB)
    pend = []
    for q in range(R2 - 2):
        for i in range(4):
            pend.append(f"s_add_u32 m0, s69, {q*S2 + i*1024}\n s_nop 0\n buffer_load_dwordx4 v{10+i}, s[24:27], s60 offen lds" +
                        (f"\n s_add_u32 s60, s60, {64*2048}" if i == 3 else ""))
    def h_tile(tt):
        hb = accr(6, tt)[1]
        for i in range(7):
            fg, g = accr(6 + i, tt); assert fg == "v"
            fu, u = accr(13 + i, tt)
            if fu == "a":
                for k in range(4): a(f"v_accvgpr_read_b32 v{6+k}, a{u+k}")
                u = 6
            a(f"v_pk_mul_f32 v[18:19], v[{g}:{g+1}], s[46:47]")
            a(f"v_pk_mul_f32 v[20:21], v[{g+2}:{g+3}], s[46:47]")
            for k in range(4): a(f"v_exp_f32 v{18+k}, v{18+k}")
            a(f"v_pk_mul_f32 v[{g}:{g+1}], v[{g}:{g+1}], v[{u}:{u+1}]")
            a(f"v_pk_mul_f32 v[{g+2}:{g+3}], v[{g+2}:{g+3}], v[{u+2}:{u+3}]")
            a(f"v_pk_add_f32 v[18:19], v[18:19], 1.0 op_sel_hi:[1,0]")
            a(f"v_pk_add_f32 v[20:21], v[20:21], 1.0 op_sel_hi:[1,0]")
            for k in range(4): a(f"v_rcp_f32 v{18+k}, v{18+k}")
            a(pend.pop(0) if pend else "s_nop 0")
            a(f"v_pk_mul_f32 v[{g}:{g+1}], v[{g}:{g+1}], v[18:19]")
            a(f"v_pk_mul_f32 v[{g+2}:{g+3}], v[{g+2}:{g+3}], v[20:21]")
            a(f"v_cvt_pk_bf16_f32 v{hb+2*i}, v{g}, v{g+1}")
            a(f"v_cvt_pk_bf16_f32 v{hb+2*i+1}, v{g+2}, v{g+3}")
        off = (tt >> 1) * HF_TG2 + (tt & 1) * 1024
        a(f"s_add_u32 s52, s61, {off}")
        a(f"s_add_u32 s53, s61, {off + 4096}")
        a(f"s_cmp_eq_u32 s62, 0")
        a(f"s_cbranch_scc0 {name}_odd{tt}")
        a(f"buffer_store_dwordx4 v[{hb}:{hb+3}], v16, s[40:43], s52 offen sc1")
        a(f"buffer_store_dwordx4 v[{hb+4}:{hb+7}], v16, s[40:43], s52 offen offset:2048 sc1")
        a(f"buffer_store_dwordx4 v[{hb+8}:{hb+11}], v16, s[40:43], s53 offen sc1")
        a(f"buffer_store_dwordx2 v[{hb+12}:{hb+13}], v16, s[40:43], s53 offen offset:2048 sc1")
        a(f"s_branch {name}_join{tt}")
        a.label(f"{name}_odd{tt}")
        a(f"buffer_store_dwordx2 v[{hb}:{hb+1}], v17, s[40:43], s52 offen sc1")
        a(f"buffer_store_dwordx4 v[{hb+2}:{hb+5}], v16, s[40:43], s52 offen offset:2048 sc1")
        a(f"buffer_store_dwordx4 v[{hb+6}:{hb+9}], v16, s[40:43], s53 offen sc1")
        a(f"buffer_store_dwordx4 v[{hb+10}:{hb+13}], v16, s[40:43], s53 offen offset:2048 sc1")
        a.label(f"{name}_join{tt}")
    for tt in range(4): h_tile(tt)
    assert not pend
    stamp("hst")
    def phi_tile(ct, tt):
        f, r = accr(ct, tt); assert f == "v"
        a(f"v_pk_mul_f32 v[18:19], v[{r}:{r+1}], s[44:45]")
        a(f"v_pk_mul_f32 v[20:21], v[{r+2}:{r+3}], s[44:45]")
        for k in range(4): a(f"v_exp_f32_e64 v{18+k}, v{18+k} clamp")
        for k in range(4): a(f"v_max_f32 v{r+k}, 0, v{r+k}")
        a(f"v_pk_add_f32 v[{r}:{r+1}], v[{r}:{r+1}], v[18:19]")
        a(f"v_pk_add_f32 v[{r+2}:{r+3}], v[{r+2}:{r+3}], v[20:21]")
        a(f"v_pk_add_f32 v[{r}:{r+1}], v[{r}:{r+1}], s[48:49]")
        a(f"v_pk_add_f32 v[{r+2}:{r+3}], v[{r+2}:{r+3}], s[48:49]")
    def pack_pair(r0, r1):
        a(f"v_cvt_pk_bf16_f32 v{r0}, v{r0}, v{r0+1}")
        a(f"v_cvt_pk_bf16_f32 v{r0+1}, v{r0+2}, v{r0+3}")
        a(f"v_cvt_pk_bf16_f32 v{r0+2}, v{r1}, v{r1+1}")
        a(f"v_cvt_pk_bf16_f32 v{r0+3}, v{r1+2}, v{r1+3}")
    for k in range(4): a(f"v_mov_b32 v{2+k}, 0x3f803f80")
    for ca in (2, 3):
        for tt in range(4): phi_tile(ca, tt)
    for ca in (2, 3, 4, 5):
        for p in range(2): pack_pair(accr(ca, 2*p)[1], accr(ca, 2*p+1)[1])
    free = [accr(ca, tt)[1] for ca in (2, 3, 4, 5) for tt in (1, 3)]
    keys = [(0,0),(0,1),(1,0),(1,1),(0,'z'),(1,'z')]
    D = {k: free[i] for i, k in enumerate(keys)}
    a("s_nop 1")
    for p in range(2):
        for aa in range(2):
            pk = accr(2 + aa, 2*p)[1]
            for bb in (0, 1, 'z'):
                vb = accr(4 + bb, 2*p)[1] if bb != 'z' else 2
                d = D[(aa, bb)]
                c = "0" if p == 0 else f"v[{d}:{d+3}]"
                a(f"v_mfma_f32_16x16x32_bf16 v[{d}:{d+3}], v[{pk}:{pk+3}], v[{vb}:{vb+3}], {c}")
    a(f"""
    s_mul_i32 s52, s3, 6144
    s_add_u32 s52, s52, {SCR}
    v_add_u32 v17, s52, v16
    s_lshl_b32 s70, s11, 5
    s_add_u32 s70, s70, s10
    s_lshl_b32 s70, s70, 7
    s_add_u32 s84, s70, {FL_H}
    s_add_u32 s85, s70, {FL_KV}
    s_add_u32 s86, s70, {FL_O}
    s_lshr_b32 s52, s50, 1                 ; mc
    s_lshl_b32 s52, s52, 12
    s_add_u32 s73, s52, {FL_O}
    s_lshl_b32 s53, s63, 11
    s_add_u32 s71, s52, s53
    s_add_u32 s71, s71, {FL_H}
    s_lshl_b32 s72, s10, 7
    s_add_u32 s72, s72, {FL_KV}
    """)
    for ti, key in enumerate(keys):
        d = D[key]
        a(f"ds_write_b128 v17, v[{d}:{d+3}] offset:{ti*1024}")
    a("s_waitcnt vmcnt(0) lgkmcnt(0)\n s_barrier")
    flag_store(84, 18, f"{name}_sig1")
    stamp("hsig")
    t0 = accr(2, 0)[1]
    a(f"""
    s_lshl_b32 s52, s3, 10
    s_add_u32 s53, s52, {SCR}
    v_add_u32 v17, s53, v16
    s_and_b32 s54, s3, 1
    s_lshl_b32 s53, s54, 10
    s_add_u32 s53, s53, {SCR}
    v_add_u32 v22, s53, v16
    """)
    for w in range(4): a(f"ds_read_b128 v[{t0+4*w}:{t0+4*w+3}], v17 offset:{w*6144}")
    for w in range(4): a(f"ds_read_b128 v[{t0+16+4*w}:{t0+16+4*w+3}], v22 offset:{w*6144+4096}")
    a(f"""
    s_lshl_b32 s58, s10, 15
    s_add_u32 s58, s58, s52
    s_add_u32 s58, s58, {KV_OFF}
    s_lshl_b32 s87, s10, 10
    s_lshl_b32 s54, s54, 6
    s_add_u32 s87, s87, s54
    s_add_u32 s87, s87, {ZP_OFF}           ; z base (+m*128)
    s_lshl_b32 s52, s11, 12
    s_add_u32 s52, s52, s58
    s_lshl_b32 s53, s11, 7
    s_add_u32 s53, s53, s87
    v_and_b32 v22, 48, v1
    s_waitcnt lgkmcnt(0)
    """)
    for base in (t0, t0 + 16):
        a(f"v_pk_add_f32 v[{base}:{base+1}], v[{base}:{base+1}], v[{base+4}:{base+5}]")
        a(f"v_pk_add_f32 v[{base+2}:{base+3}], v[{base+2}:{base+3}], v[{base+6}:{base+7}]")
        a(f"v_pk_add_f32 v[{base+8}:{base+9}], v[{base+8}:{base+9}], v[{base+12}:{base+13}]")
        a(f"v_pk_add_f32 v[{base+10}:{base+11}], v[{base+10}:{base+11}], v[{base+14}:{base+15}]")
        a(f"v_pk_add_f32 v[{base}:{base+1}], v[{base}:{base+1}], v[{base+8}:{base+9}]")
        a(f"v_pk_add_f32 v[{base+2}:{base+3}], v[{base+2}:{base+3}], v[{base+10}:{base+11}]")
    a(f"buffer_store_dwordx4 v[{t0}:{t0+3}], v16, s[40:43], s52 offen sc1")
    a(f"buffer_store_dwordx4 v[{t0+16}:{t0+19}], v22, s[40:43], s53 offen sc1")
    for tt in range(4):
        phi_tile(0, tt); phi_tile(1, tt); pack_pair(accr(0, tt)[1], accr(1, tt)[1])
    V_BY, V_BS, V_W, V_Y, V_S, V_X, V_E = 40, 56, 64, 128, 192, 224, 240
    a(f"""
    v_lshrrev_b32 v18, 2, v1
    v_and_b32 v19, 3, v1
    v_lshlrev_b32 v19, 3, v19
    v_lshl_add_u32 v20, v18, 8, v19
    v_and_b32 v21, 7, v18
    """)
    for nt in range(8):
        a(f"v_xor_b32 v2, {nt}, v21")
        a(f"v_lshl_add_u32 v{V_BY+nt}, v2, 5, v20")
        a(f"v_add_u32 v{V_BY+8+nt}, 0x10000, v{V_BY+nt}")
    a(f"""
    v_lshl_add_u32 v20, v18, 7, v19
    v_bfe_u32 v21, v1, 3, 2
    """)
    for nt in range(4):
        a(f"v_xor_b32 v2, {nt}, v21")
        a(f"v_lshl_add_u32 v{V_BS+nt}, v2, 5, v20")
        a(f"v_add_u32 v{V_BS+4+nt}, 0x10000, v{V_BS+nt}")
    a(f"""
    v_lshrrev_b32 v18, 3, v1
    v_bfe_u32 v19, v1, 1, 2
    v_bfe_u32 v20, v1, 4, 2
    v_xor_b32 v19, v19, v20
    v_lshlrev_b32 v6, 11, v18
    v_lshl_add_u32 v6, v19, 5, v6
    v_and_b32 v19, 1, v1
    v_lshl_add_u32 v6, v19, 4, v6
    s_lshl_b32 s54, s51, 8
    s_lshl_b32 s53, s63, 7
    s_add_u32 s54, s54, s53
    s_lshl_b32 s52, s3, 16
    s_add_u32 s52, s52, s54
    v_add_u32 v6, s52, v6
    v_add_u32 v7, 16384, v6
    v_add_u32 v8, 32768, v6
    v_add_u32 v9, 49152, v6
    v_and_b32 v18, 15, v1
    v_lshlrev_b32 v15, 11, v18
    v_lshrrev_b32 v19, 1, v22
    v_add_u32 v15, v15, v19
    v_lshlrev_b32 v14, 7, v18
    s_lshl_b32 s52, s50, 2
    s_add_u32 s52, s52, s3                 ; tg2
    s_lshl_b32 s56, s52, 16
    s_add_u32 s56, s56, s54
    s_add_u32 s57, s56, 32768
    s_mul_i32 s52, s52, {HF_TG2}
    s_add_u32 s52, s52, {HF_OFF}
    s_lshl_b32 s65, s10, 11
    s_add_u32 s65, s65, s59
    s_add_u32 s65, s65, {112*2048}
    s_add_u32 s66, s65, {HF_TG2}
    s_lshl_b32 s74, s2, 2
    s_add_u32 s74, s74, s3
    s_xor_b32 s75, s74, 4
    s_lshl_b32 s67, s74, 13
    s_add_u32 s67, s67, {YX_OFF}
    s_lshl_b32 s68, s75, 13
    s_add_u32 s68, s68, {YX_OFF}
    s_lshl_b32 s74, s74, 7
    s_add_u32 s74, s74, {FL_Y}
    s_lshl_b32 s75, s75, 7
    s_add_u32 s75, s75, {FL_Y}
    s_mul_i32 s64, s63, {56*2048}
    """)
    srd_off(a, 32, "s22", "s23", "s52", HF_TG2)
    srd(a, 36, "s4", "s5", XB)
    srd(a, 52, "s18", "s19", XB)
    for L in range(64): a(f"v_mov_b32 v{V_Y+L}, 0")
    NY, NS = 56, 32
    frags = [(t, nt) for t in range(NY) for nt in range(8)] + [(t, nt) for t in range(NY, NY + NS) for nt in range(4)]
    NF = len(frags)
    def slot_of(t): return t >> 1 if t < NY else 28 + ((t - NY) >> 2)
    def rd(f):
        t, nt = frags[f]; q = slot_of(t); pos = q % R2; r = V_W + 4 * (f % 16)
        hi = pos >> 2; o = (pos & 3) * S2
        if t < NY: b = V_BY + 8 * hi + nt; o += (t & 1) * 8192; st = 4096
        else: b = V_BS + 4 * hi + nt; o += ((t - NY) & 3) * 4096; st = 2048
        return [f"ds_read_b64_tr_b16 v[{r}:{r+1}], v{b} offset:{o}", f"ds_read_b64_tr_b16 v[{r+2}:{r+3}], v{b} offset:{o+st}"]
    for f in range(8):
        for ins in rd(f): a(ins)
    stamp("g2set")
    poll_wave0(2, 14, 71, f"{name}_poll1")
    a("s_waitcnt vmcnt(0)\n s_barrier")
    flag_store(85, 4, f"{name}_sig2")
    stamp("hpoll")
    vm = []
    def hload(t, t2):
        r = 8 * (t % HR) + 4 * t2
        return f"buffer_load_dwordx4 a[{r}:{r+3}], v16, s[32:35], s64 offen offset:{(t&1)*2048 + t2*1024} sc1"
    def hadv(t):
        if t == NY - 1: return [f"s_mov_b32 s64, {112*2048}"]
        return ["s_add_u32 s64, s64, 4096"] if t & 1 else []
    for t in range(HR - 1):
        for t2 in range(2): a(hload(t, t2)); vm.append(("h", t))
        for ins in hadv(t): a(ins)
    fl = [[[], []] for _ in range(NF)]
    pre = [[] for _ in range(NF + 1)]
    first_f = {}
    for f, (t, nt) in enumerate(frags): first_f.setdefault(t, f)
    Fq = {}
    for f, (t, nt) in enumerate(frags): Fq.setdefault(slot_of(t), f)
    for t in range(NY + NS):
        tn = t + HR - 1
        if tn < NY + NS:
            f0 = first_f[t]
            fl[f0][0].append((hload(tn, 0), ("h", tn)))
            fl[f0][1].append((hload(tn, 1), ("h", tn)))
            for ins in hadv(tn): fl[f0 + 1][0].append((ins, None))
    bars = sorted(Fq[q] - 8 for q in range(1, 36))
    for q in range(1, 36):
        fb = Fq[q] - 8
        qn = q - 2 + R2
        nxt = [x for x in bars if x > fb]
        fe = nxt[0] if nxt else NF
        tneed = sorted({frags[f][0] for f in range(fb, fe)})
        pre[fb].append(("bar", [("d", q)] + [("h", t) for t in tneed]))
        if q >= 2 or True:
            if R2 - 2 <= qn < 36:
                for i in range(4):
                    fpos = fb + 2 + 3 * i
                    vo = (10 + i) if qn < 28 else (6 + i)
                    sr = 24 if qn < 28 else 28
                    if i == 0 and qn == 28: fl[fpos - 1][1].append(("s_mov_b32 s60, 0", None))
                    fl[fpos][0].append((f"s_add_u32 m0, s69, {(qn % R2)*S2 + i*1024}", None))
                    fl[fpos][1].append((f"buffer_load_dwordx4 v{vo}, s[{sr}:{sr+3}], s60 offen lds", ("d", qn)))
                    if i == 3: fl[fpos + 1][0].append((f"s_add_u32 s60, s60, {(64 if qn < 28 else 128)*2048}", None))
    for i in range(4):
        fl[1 + i][1].append((f"s_add_u32 m0, s69, {(R2-2)*S2 + i*1024}", None))
        fl[2 + i][0].append((f"buffer_load_dwordx4 v{10+i}, s[24:27], s60 offen lds", ("d", R2 - 2)))
    fl[6][0].append((f"s_add_u32 s60, s60, {64*2048}", None))
    T = V_S; O = T + 16
    def at(t, item): pre[first_f[t] + 4 if t < NY else first_f[t] + 2].append(item)
    P = dict(kvpoll=3, kvchk=8, sum=14, oc=17, osig=24, opoll=33, ochk=40, xres=46, ysend=57, yflag=65, ypoll=72, ychk=78)
    P.update(pos)
    at(P["kvpoll"], ("code", ["v_and_b32 v14, 7, v1", "v_lshlrev_b32 v14, 12, v14", (poll_load(2, 14, 72), "pk")]))
    blk = [poll_check(2, 14, 72, f"{name}_ck1")]
    for p in range(8):
        blk.append((f"buffer_load_dwordx4 v[{T+4*p}:{T+4*p+3}], v16, s[40:43], s58 offen sc1", "kv"))
        if p < 7: blk.append("s_add_u32 s58, s58, 4096")
    for p in range(8):
        blk.append((f"buffer_load_dwordx4 v[{T+32+4*p}:{T+32+4*p+3}], v22, s[40:43], s87 offen offset:{p*128} sc1", "kv"))
    at(P["kvchk"], ("wait", ["pk"])); at(P["kvchk"], ("code", blk))
    blk = []
    for base in (T, T + 32):
        for n in (4, 2, 1):
            for i in range(n):
                for hh in range(2):
                    d = base + 4 * i + 2 * hh; s2_ = base + 4 * (i + n) + 2 * hh
                    blk.append(f"v_pk_add_f32 v[{d}:{d+1}], v[{d}:{d+1}], v[{s2_}:{s2_+1}]")
        blk.append(f"v_cvt_pk_bf16_f32 v{base}, v{base}, v{base+1}")
        blk.append(f"v_cvt_pk_bf16_f32 v{base+1}, v{base+2}, v{base+3}")
    blk.append(f"""s_and_b32 s80, s3, 1
    s_lshr_b32 s81, s3, 1
    s_lshl_b32 s83, s80, 10
    s_lshl_b32 s81, s81, 3
    s_add_u32 s83, s83, s81
    s_add_u32 s83, s83, {SCR}
    v_add_u32 v18, s83, v16
    s_lshl_b32 s80, s80, 3
    s_add_u32 s80, s80, {SCR + 2048}
    v_add_u32 v19, s80, v16
    ds_write_b64 v18, v[{T}:{T+1}]
    ds_write_b64 v19, v[{T+32}:{T+33}]
    v_add_u32 v18, {SCR}, v16
    s_waitcnt lgkmcnt(0)""")
    at(P["sum"], ("wait", ["kv"])); at(P["sum"], ("code", blk))
    blk = [f"ds_read_b128 v[{T+4*i}:{T+4*i+3}], v18 offset:{i*1024}" for i in range(3)] + ["s_waitcnt lgkmcnt(0)"]
    for i in range(4):
        pq = accr(0, i)[1]
        for f in range(3):
            d = O + 12 * i + 4 * f
            blk.append(f"v_mfma_f32_16x16x32_bf16 v[{d}:{d+3}], v[{T+4*f}:{T+4*f+3}], v[{pq}:{pq+3}], 0")
    at(P["oc"], ("code", blk))
    blk = []
    for i in range(4):
        d = O + 12 * i
        blk += [f"v_add_f32 v{d+8}, {EPS6:#x}, v{d+8}", f"v_rcp_f32 v{d+8}, v{d+8}", "s_nop 0", f"v_mov_b32 v{d+9}, v{d+8}"]
        for q in range(4): blk.append(f"v_pk_mul_f32 v[{d+2*q}:{d+2*q+1}], v[{d+2*q}:{d+2*q+1}], v[{d+8}:{d+9}]")
        for q in range(4): blk.append(f"v_cvt_pk_bf16_f32 v{d+q}, v{d+2*q}, v{d+2*q+1}")
        blk.append((f"buffer_store_dwordx4 v[{d}:{d+3}], v16, s[40:43], s{65 + (i>>1)} offen offset:{(i&1)*1024} sc1", "os"))
    at(P["oc"] + 1, ("code", blk))
    at(P["osig"], ("wait", ["os"]))
    at(P["osig"] + 2, ("flag0", (86, f"{name}_sig3")))
    at(P["opoll"], ("code", ["v_and_b32 v14, 31, v1", "v_lshlrev_b32 v14, 7, v14", (poll_load(2, 14, 73), "po")]))
    at(P["ochk"], ("wait", ["po"])); at(P["ochk"], ("code", [poll_check(2, 14, 73, f"{name}_ck2")]))
    assert P["ochk"] < NY - (HR - 1)
    blk = [f"v_mov_b32 v{V_S+L}, 0" for L in range(32)]
    for t2 in range(2):
        for nt in range(4):
            r = V_X + 8 * t2 + 2 * nt
            blk.append((f"buffer_load_dwordx2 v[{r}:{r+1}], v15, s[36:39], s{56+t2} offen offset:{nt*32}", "xr"))
    at(P["xres"], ("code", blk))
    blk = []
    for i in range(8):
        r = V_Y + 32 + 4 * i
        blk.append((f"buffer_store_dwordx4 v[{r}:{r+3}], v16, s[40:43], s67 offen offset:{(i&3)*1024} sc1", "ys"))
        if i == 3: blk.append("s_add_u32 s67, s67, 4096")
    at(P["ysend"], ("code", blk))
    at(P["yflag"], ("wait", ["ys"])); at(P["yflag"], ("flagw", 74))
    at(P["ypoll"], ("code", ["v_mov_b32 v14, 0", (poll_load(2, 14, 75), "py")]))
    blk = [poll_check(2, 14, 75, f"{name}_ck3")]
    for i in range(8):
        r = V_Y + 32 + 4 * i
        blk.append((f"buffer_load_dwordx4 v[{r}:{r+3}], v16, s[40:43], s68 offen offset:{(i&3)*1024} sc1", "yr"))
        if i == 3: blk.append("s_add_u32 s68, s68, 4096")
    at(P["ychk"], ("wait", ["py"])); at(P["ychk"], ("code", blk))
    done = [-1]
    def vmwait(tags):
        idx = [i for i, t in enumerate(vm) if t in tags]
        if not idx or max(idx) <= done[0]: return None
        done[0] = max(idx)
        n = len(vm) - 1 - max(idx)
        assert n <= 63
        return n
    n = vmwait([("h", 0)])
    a(f"s_waitcnt vmcnt({n})")
    stamp("loop2")
    a.raw(".p2align 6")
    for f, (t, nt) in enumerate(frags):
        waited = False
        for kind, arg in pre[f]:
            if kind == "bar":
                n = vmwait(arg)
                a((f"s_waitcnt vmcnt({n}) lgkmcnt(12)" if n is not None else "s_waitcnt lgkmcnt(12)") + "\n s_barrier")
                waited = True
            elif kind == "wait":
                n = vmwait(arg)
                if n is not None: a(f"s_waitcnt vmcnt({n})")
            elif kind == "code":
                for it in arg:
                    if isinstance(it, tuple): a(it[0]); vm.append(it[1])
                    else: a(it)
            elif kind == "flag0": flag_store(arg[0], 4, arg[1])
            elif kind == "flagw": flag_store(arg, 4, None, wave0=False); vm.append("fw")
        if f % 2 == 0 and not waited:
            a("s_waitcnt lgkmcnt(12)" if f + 8 < NF else f"s_waitcnt lgkmcnt({max(0, 2 * (NF - f - 2))})")
        if t == NY and nt == 0: stamp("yend")
        if t in fine and nt == 0: stamp(f"t{t}")
        r = rd(f + 8) if f + 8 < NF else [None, None]
        w = V_W + 4 * (f % 16)
        for g, t2 in enumerate((0, 1) if f % 2 == 0 else (1, 0)):
            hh = 8 * (t % HR) + 4 * t2
            d = (V_Y if t < NY else V_S) + 8 * nt + 4 * t2
            a(f"v_mfma_f32_16x16x32_bf16 v[{d}:{d+3}], v[{w}:{w+3}], a[{hh}:{hh+3}], v[{d}:{d+3}]")
            if r[g]: a(r[g] if not (abl2 & 4) else "s_nop 0")
            for ins, tag in fl[f][g]:
                if (abl2 & 1) and " lds" in ins: ins = DUMMY
                if (abl2 & 2) and ins.startswith("buffer_load_dwordx4 a["): ins = DUMMY
                a(ins)
                if tag: vm.append(tag)
    stamp("loop2end")
    a("s_waitcnt vmcnt(0)\n s_nop 7")
    def rnd(r):
        a(f"v_cvt_pk_bf16_f32 v{r+1}, v{r}, v{r+1}")
        a(f"v_lshlrev_b32 v{r}, 16, v{r+1}")
        a(f"v_and_b32 v{r+1}, 0xffff0000, v{r+1}")
    for t2 in range(2):
        for nt in range(4):
            s_ = V_S + 8 * nt + 4 * t2; y = V_Y + 8 * nt + 4 * t2; xr = V_X + 8 * t2 + 2 * nt
            e = V_E
            for p in range(2): a(f"v_pk_add_f32 v[{y+2*p}:{y+2*p+1}], v[{y+2*p}:{y+2*p+1}], v[{y+32+2*p}:{y+32+2*p+1}]")
            for p in range(2): rnd(y + 2*p); rnd(s_ + 2*p)
            for p in range(2): a(f"v_pk_mul_f32 v[{e+2*p}:{e+2*p+1}], v[{y+2*p}:{y+2*p+1}], s[46:47]")
            for k in range(4): a(f"v_exp_f32 v{e+k}, v{e+k}")
            a("s_nop 0")
            for p in range(2): a(f"v_pk_add_f32 v[{e+2*p}:{e+2*p+1}], v[{e+2*p}:{e+2*p+1}], 1.0 op_sel_hi:[1,0]")
            for k in range(4): a(f"v_rcp_f32 v{e+k}, v{e+k}")
            a("s_nop 0")
            for p in range(2): a(f"v_pk_mul_f32 v[{y+2*p}:{y+2*p+1}], v[{y+2*p}:{y+2*p+1}], v[{e+2*p}:{e+2*p+1}]")
            for p in range(2): rnd(y + 2*p)
            for p in range(2): a(f"v_pk_mul_f32 v[{y+2*p}:{y+2*p+1}], v[{y+2*p}:{y+2*p+1}], v[{s_+2*p}:{s_+2*p+1}]")
            for p in range(2): rnd(y + 2*p)
            for p in range(2):
                a(f"v_lshlrev_b32 v{e+2*p}, 16, v{xr+p}")
                a(f"v_and_b32 v{e+2*p+1}, 0xffff0000, v{xr+p}")
            for p in range(2): a(f"v_pk_add_f32 v[{y+2*p}:{y+2*p+1}], v[{y+2*p}:{y+2*p+1}], v[{e+2*p}:{e+2*p+1}]")
            for p in range(2): a(f"v_cvt_pk_bf16_f32 v{xr+p}, v{y+2*p}, v{y+2*p+1}")
            a(f"buffer_store_dwordx2 v[{xr}:{xr+1}], v15, s[52:55], s{56+t2} offen offset:{nt*32}")
    a(f"""
    s_add_u32 s80, s2, s3
    s_cmp_eq_u32 s80, 0
    s_cbranch_scc0 {name}_noep
    s_mov_b32 s80, {EPOCH}
    v_mov_b32 v4, s92
    s_mov_b64 exec, 1
    buffer_store_dword v4, v16, s[40:43], s80 offen
    s_mov_b64 exec, -1
    """)
    a.label(f"{name}_noep")
    if stamps:
        a("s_waitcnt vmcnt(0)")
        stamp("end")
        a(f"""
        v_lshlrev_b32 v12, 2, v1
        s_lshl_b32 s80, s2, 2
        s_add_u32 s80, s80, s3
        s_lshl_b32 s80, s80, 8
        s_add_u32 s80, s80, {ST_OFF}
        buffer_store_dword v0, v12, s[40:43], s80 offen
        """)
    a.label(f"{name}_end")
    a("s_endpgm")
    a.label(f"{name}_codeend")
    return a.text(), 256 + A_END, 102, 256, (NBs, None, stamp_names)

def build(**kw):
    txt, nv, ns, ac, info = gen(**kw)
    s = HEADER + f"; @launch grid=(256,1,1) block=(256,1,1) lds={LDS_BYTES}\n"
    s += '.amdgcn_target "amdgcn-amd-amdhsa--gfx950"\n.text\n' + kernel_begin(KN) + txt
    s += '.section .rodata,"a"\n.p2align 6\n' + kernel_desc(KN, nv, ns, ac)
    return s

if __name__ == "__main__":
    print(gen()[4])
    open("f_stamps.s", "w").write(build(stamps=True))
    open("f.s", "w").write(build())
```

```python
import sys
from asmlib import *

XF_OFF  = 0
KV_OFF  = 4 << 20
ZP_OFF  = 5 << 20
FL_OFF  = (5 << 20) + (512 << 10)
FL_LN, FL_KV, FL_H, FL_O = FL_OFF, FL_OFF + 32768, FL_OFF + 65536, FL_OFF + 98304
FL_Y    = FL_OFF + 131072
EPOCH   = FL_OFF + 262144
YX_OFF  = 6 << 20
HF_OFF  = 16 << 20
ST_OFF  = 34 << 20
WS_USED = 40 << 20
HF_TG2  = 144 * 2048
LOG2E, NLOG2E, EPS6, EPS5 = 0x3fb8aa3b, 0xbfb8aa3b, 0x358637bd, 0x3727c5ac
QB, GB, DB, OB, XB = 1024*3072*2, 1024*3584*2, 3584*1024*2, 1024*1024*2, 2048*1024*2
SCR = 148 * 1024
LDS_BYTES = 160 * 1024
KN = "recurrent_scan__linear_attn_block__swiglu_ffn__prompt_kernel"

def srd(a, d, lo, hi, nbytes):
    a(f"""
    s_mov_b32 s{d}, {lo}
    s_and_b32 s{d+1}, {hi}, 0xffff
    s_mov_b32 s{d+2}, {nbytes}
    s_mov_b32 s{d+3}, 0x00020000
    """)

def srd_off(a, d, lo, hi, soff, nbytes):
    a(f"""
    s_add_u32 s{d}, {lo}, {soff}
    s_addc_u32 s{d+1}, {hi}, 0
    s_and_b32 s{d+1}, s{d+1}, 0xffff
    s_mov_b32 s{d+2}, {nbytes}
    s_mov_b32 s{d+3}, 0x00020000
    """)

def gen(stamps=False, L0=192, psleep=1, pos={}, clk=0, fine=(), mimic=0, it1=0, npre=4, nx=3):
    name = "L"
    a = Asm()
    XR, R, SLOT = 4, 5, 20480
    NV, VB = 58, 24
    A_W, A_X = 0, 40
    A_ACC = A_X + 16 * XR
    A_END = A_ACC + (80 - NV) * 4
    A_XR = A_END
    S2, R2, HR = 16384, 8, 14
    POS2 = [102400, 118784, 135168, 40960, 61440, 81920, 0, 20480]
    KVSCR = 20480
    def accr(ct, tt):
        L = ct * 4 + tt
        if 6 <= ct < 13: L = 24 + tt * 7 + (ct - 6)
        return ("v", VB + 4 * L) if L < NV else ("a", A_ACC + 4 * (L - NV))
    def acc(ct, tt):
        f, r = accr(ct, tt); return f"{f}[{r}:{r+3}]"
    def wfrag(c): return A_W + 4 * (c % 10)
    def xfrag(u, tt): return A_X + 16 * (u % XR) + 4 * tt
    stamp_names = []
    def stamp(nm):
        if not stamps: return
        i = len(stamp_names); stamp_names.append(nm)
        op = "s_memtime" if clk else "s_memrealtime"
        if i == 0: a(f"{op} s[90:91]")
        else:
            a(f"{op} s[100:101]\n s_waitcnt lgkmcnt(0)")
            if i == 1: a("v_writelane_b32 v0, s90, 0")
            a(f"v_writelane_b32 v0, s100, {i}")
    def flag_store(soff, vt, lbl, wave0=True):
        if wave0: a(f"s_cmp_eq_u32 s3, 0\n s_cbranch_scc0 {lbl}")
        a(f"""
        v_mov_b32 v{vt}, s92
        v_mov_b32 v{vt+1}, s93
        s_mov_b64 exec, 1
        buffer_store_dwordx2 v[{vt}:{vt+1}], v16, s[40:43], s{soff} offen sc0 sc1
        s_mov_b64 exec, -1
        """)
        if wave0: a.label(lbl)
    def poll_load(vp, vidx, soff):
        return f"buffer_load_dwordx2 v[{vp}:{vp+1}], v{vidx}, s[40:43], s{soff} offen sc0 sc1"
    def poll_check(vp, vidx, soff, lbl):
        return f"""s_mov_b32 s99, 0
        {lbl}:
        v_xor_b32 v{vp}, s92, v{vp}
        v_xor_b32 v{vp+1}, s93, v{vp+1}
        v_or_b32 v{vp}, v{vp}, v{vp+1}
        v_cmp_ne_u32 vcc, 0, v{vp}
        s_cbranch_vccz {lbl}_ok
        {"s_sleep " + str(psleep) if psleep else ""}
        {poll_load(vp, vidx, soff)}
        s_add_u32 s99, s99, 1
        s_cmp_lt_u32 s99, 0x40000
        s_waitcnt vmcnt(0)
        s_cbranch_scc1 {lbl}
        {lbl}_ok:"""

    a(f"""
    s_cmp_ge_u32 s2, 256
    s_cbranch_scc1 {name}_end
    s_load_dwordx4 s[4:7], s[0:1], 0
    s_load_dwordx2 s[8:9], s[0:1], 16
    s_load_dwordx4 s[12:15], s[0:1], 32
    s_load_dwordx4 s[16:19], s[0:1], 48
    s_load_dwordx4 s[20:23], s[0:1], 64
    """)
    stamp("start")
    a(f"""
    s_getpc_b64 s[76:77]
    v_lshlrev_b32 v17, 7, v0
    global_load_dword v23, v17, s[76:77]
    v_and_b32 v1, 63, v0
    v_lshrrev_b32 v3, 6, v0
    v_lshlrev_b32 v16, 4, v1
    v_readfirstlane_b32 s3, v3
    v_and_b32 v24, 7, v0
    v_bfe_u32 v25, v0, 3, 3
    v_lshlrev_b32 v26, 11, v24
    v_lshl_add_u32 v26, v25, 4, v26
    v_lshl_add_u32 v26, v3, 9, v26
    s_lshl_b32 s75, s2, 14
    s_waitcnt lgkmcnt(0)
    """)
    srd(a, 80, "s4", "s5", XB)
    for i in range(4):
        a(f"buffer_load_dwordx4 v[{32+4*i}:{35+4*i}], v26, s[80:83], s75 offen offset:{128*i}")
    a(f"""
    s_add_u32 s94, s22, {EPOCH}
    s_addc_u32 s95, s23, 0
    s_load_dword s92, s[94:95], 0
    """)
    srd(a, 44, "s12", "s13", GB)
    srd(a, 48, "s14", "s15", GB)
    srd(a, 52, "s6", "s7", QB)
    n_early = 0
    for (sr, pitch) in ((44, 7168), (48, 7168), (52, 6144)):
        chunk = -(-L0 * pitch // (256 * 128)) * 128
        assert chunk <= 256 * 128
        a(f"s_mul_i32 s75, s2, {chunk}")
        a(f"v_min_u32 v18, {chunk-128}, v17")
        a(f"buffer_load_dword v23, v18, s[{sr}:{sr+3}], s75 offen")
        n_early += 1
    a(f"""
    v_lshlrev_b32 v27, 15, v3
    v_lshrrev_b32 v28, 2, v25
    v_lshl_add_u32 v27, v28, 12, v27
    v_and_b32 v28, 3, v25
    v_lshl_add_u32 v27, v28, 8, v27
    v_lshl_add_u32 v27, v24, 4, v27
    v_lshlrev_b32 v29, 6, v24
    v_add_u32 v29, {SCR}, v29
    v_bfe_u32 v28, v0, 4, 2
    v_lshl_add_u32 v28, v28, 2, v29
    v_lshl_add_u32 v28, v3, 4, v28
    s_lshr_b32 s76, s2, 3
    s_lshl_b32 s76, s76, 17
    s_bfe_u32 s77, s2, 0x20001
    s_lshl_b32 s77, s77, 10
    s_add_u32 s76, s76, s77
    s_and_b32 s77, s2, 1
    s_lshl_b32 s77, s77, 7
    s_add_u32 s76, s76, s77
    s_add_u32 s77, s76, 8192
    s_add_u32 s78, s76, 16384
    s_add_u32 s79, s76, 24576
    s_and_b32 s10, s2, 7
    s_lshl_b32 s10, s10, 2
    s_bfe_u32 s11, s2, 0x20003
    s_add_u32 s10, s10, s11          ; j
    s_lshr_b32 s11, s2, 5            ; m
    s_mul_i32 s94, s3, 5
    s_movk_i32 s95, 4682
    """)
    srd(a, 40, "s22", "s23", WS_USED)
    for i in range(5):
        a(f"""
        s_add_u32 s84, s94, {i}
        s_cmp_lt_u32 s84, 13
        s_cselect_b32 s85, 6, 13
        s_cmp_lt_u32 s84, 6
        s_cselect_b32 s85, 0, s85
        s_cselect_b32 s86, 5462, s95
        s_cselect_b32 s87, 12, 14
        v_mov_b32 v21, s86
        s_cselect_b32 s88, 2048, 64
        s_cselect_b32 s89, 2, 0
        s_cselect_b32 s86, 64, 224
        s_sub_u32 s84, s84, s85
        s_lshl_b32 s85, s87, 9
        s_lshl_b32 s84, s84, 6
        s_mul_i32 s86, s86, s10
        v_add_u32 v17, s84, v1
        v_mul_u32_u24 v18, v21, v17
        v_lshrrev_b32 v18, 16, v18
        v_mul_u32_u24 v19, s87, v18
        v_sub_u32 v17, v17, v19
        v_lshrrev_b32 v19, 1, v18
        v_and_b32 v19, s89, v19
        v_xor_b32 v17, v17, v19
        v_and_b32 v19, 3, v18
        v_bfe_u32 v20, v18, 4, 1
        v_lshl_or_b32 v19, v20, 2, v19
        v_bfe_u32 v20, v18, 2, 2
        v_lshl_or_b32 v19, v20, 3, v19
        v_mul_u32_u24 v19, s85, v19
        v_lshrrev_b32 v20, 2, v17
        v_mul_u32_u24 v20, s88, v20
        v_and_b32 v17, 3, v17
        v_lshl_add_u32 v20, v17, 4, v20
        v_add3_u32 v{2+i}, v19, v20, s86
        """)
    a(f"""
    v_bfe_u32 v17, v1, 2, 4
    v_and_b32 v18, 3, v1
    v_lshlrev_b32 v18, 3, v18
    v_mul_u32_u24 v9, 224, v17
    v_add_u32 v9, v9, v18
    v_mul_u32_u24 v7, 192, v17
    v_add_u32 v7, v7, v18
    v_bfe_u32 v19, v1, 4, 1
    v_lshlrev_b32 v19, 5, v19
    v_sub_u32 v8, v7, v19
    v_add_u32 v7, v7, v19
    v_mov_b32 v10, v7
    v_mov_b32 v11, v8
    v_mov_b32 v12, v9
    s_lshl_b32 s73, s2, 12
    s_add_u32 s71, s73, {L0*7168}
    s_add_u32 s72, s73, {L0*6144}
    s_mov_b32 s74, s73
    """)
    def sel_srd(d, w_gate_from, w_up_from):
        a(f"""
        s_cmp_lt_u32 s3, {w_up_from}
        s_cselect_b32 s{d}, s12, s14
        s_cselect_b32 s{d+1}, s13, s15
        s_cmp_lt_u32 s3, {w_gate_from}
        s_cselect_b32 s{d}, s6, s{d}
        s_cselect_b32 s{d+1}, s7, s{d+1}
        s_cselect_b32 s{d+2}, {QB}, s84
        s_and_b32 s{d+1}, s{d+1}, 0xffff
        s_mov_b32 s{d+3}, 0x00020000
        """)
    a(f"s_mov_b32 s84, {GB}")
    sel_srd(24, 2, 3); sel_srd(28, 1, 3); sel_srd(32, 1, 2)
    a(f"""
    s_mov_b32 s84, {32*7168}
    s_cmp_lt_u32 s3, 2
    s_cselect_b32 s62, {32*6144}, s84
    s_cmp_lt_u32 s3, 1
    s_cselect_b32 s63, {32*6144}, s84
    s_mov_b32 s60, 0
    s_mov_b32 s61, 0
    s_mov_b32 s64, 0
    s_mul_i32 s69, s3, 5120
    s_lshl_b32 s84, s11, 2
    s_add_u32 s84, s84, s3
    s_lshl_b32 s84, s84, 17
    """)
    srd_off(a, 36, "s22", "s23", "s84", 131072)
    srd(a, 56, "s16", "s17", DB)
    a(f"""
    s_and_b32 s98, s2, 1
    s_bfe_u32 s20, s2, 0x10002
    s_lshl_b32 s20, s20, 3
    s_bfe_u32 s84, s2, 0x30003
    s_add_u32 s20, s20, s84
    s_bfe_u32 s21, s2, 0x10001
    s_lshl_b32 s21, s21, 2
    s_lshr_b32 s84, s2, 6
    s_add_u32 s21, s21, s84
    s_lshl_b32 s84, s20, 2
    s_add_u32 s84, s84, s3
    s_lshl_b32 s96, s84, 16
    s_lshl_b32 s84, s21, 8
    s_lshl_b32 s86, s98, 7
    s_add_u32 s84, s84, s86
    s_add_u32 s96, s96, s84
    s_add_u32 s97, s96, 32768
    v_and_b32 v22, 15, v1
    v_lshlrev_b32 v22, 11, v22
    v_bfe_u32 v18, v1, 4, 2
    v_lshl_add_u32 v22, v18, 3, v22
    v_and_b32 v17, 31, v1
    v_lshlrev_b32 v17, 7, v17
    s_mov_b32 s65, {(R-1)*SLOT}
    s_mov_b32 s66, 0
    s_mov_b32 s67, {SLOT}
    s_mov_b32 s68, 0
    s_and_b32 s89, s9, 0xffff
    s_lshl_b32 s84, s2, 7
    s_add_u32 s84, s84, {FL_LN}
    s_lshl_b32 s85, s11, 12
    s_add_u32 s85, s85, {FL_LN}
    s_lshl_b32 s88, s3, 12             ; w*4096
    s_mul_i32 s75, s98, {56*32*2048}   ; W2 soffset
    """)
    for i in range(4):
        a(f"s_waitcnt vmcnt({3-i+n_early})")
        for d in range(4):
            s = 32 + 4*i + d
            a(f"v_lshlrev_b32 v{48+2*(4*i+d)}, 16, v{s}")
            a(f"v_and_b32 v{49+2*(4*i+d)}, 0xffff0000, v{s}")
    def tree(src, tmp):
        for i in range(8):
            a(f"v_pk_add_f32 v[{tmp+2*i}:{tmp+2*i+1}], v[{src+4*i}:{src+4*i+1}], v[{src+4*i+2}:{src+4*i+3}]")
        for n in (4, 2, 1):
            for i in range(n):
                a(f"v_pk_add_f32 v[{tmp+2*i}:{tmp+2*i+1}], v[{tmp+2*i}:{tmp+2*i+1}], v[{tmp+2*(i+n)}:{tmp+2*(i+n)+1}]")
        a(f"v_add_f32 v{tmp}, v{tmp}, v{tmp+1}")
    def wg_reduce(tmp, ldsoff):
        a(f"""
        s_nop 1
        v_add_f32_dpp v{tmp}, v{tmp}, v{tmp} row_ror:8 row_mask:0xf bank_mask:0xf
        ds_write_b32 v28, v{tmp} offset:{ldsoff}
        s_waitcnt lgkmcnt(0)
        s_barrier
        """)
        for i in range(4):
            a(f"ds_read_b128 v[{tmp+4*i}:{tmp+4*i+3}], v29 offset:{ldsoff+16*i}")
        a("s_waitcnt lgkmcnt(0)")
        for n in (4, 2, 1):
            for i in range(n):
                a(f"v_pk_add_f32 v[{tmp+2*i}:{tmp+2*i+1}], v[{tmp+2*i}:{tmp+2*i+1}], v[{tmp+2*(i+n)}:{tmp+2*(i+n)+1}]")
        a(f"v_add_f32 v{tmp}, v{tmp}, v{tmp+1}")
    tree(48, 80)
    wg_reduce(80, 0)
    a("v_mul_f32 v24, 0x3a800000, v80\n v_mov_b32 v25, v24")
    for i in range(16):
        a(f"v_pk_add_f32 v[{96+2*i}:{97+2*i}], v[{48+2*i}:{49+2*i}], v[24:25] neg_lo:[0,1] neg_hi:[0,1]")
    for i in range(4):
        a(f"v_pk_mul_f32 v[{80+2*i}:{81+2*i}], v[{96+2*i}:{97+2*i}], v[{96+2*i}:{97+2*i}]")
    for i in range(4, 16):
        d = 80 + 2 * (i % 4)
        a(f"v_pk_fma_f32 v[{d}:{d+1}], v[{96+2*i}:{97+2*i}], v[{96+2*i}:{97+2*i}], v[{d}:{d+1}]")
    a("""
    v_pk_add_f32 v[80:81], v[80:81], v[84:85]
    v_pk_add_f32 v[82:83], v[82:83], v[86:87]
    v_pk_add_f32 v[80:81], v[80:81], v[82:83]
    v_add_f32 v80, v80, v81
    v_cvt_pk_bf16_f32 v31, v24, v24
    v_lshlrev_b32 v24, 16, v31
    v_mov_b32 v25, v24
    """)
    a(f"""
    s_nop 1
    v_add_f32_dpp v80, v80, v80 row_ror:8 row_mask:0xf bank_mask:0xf
    ds_write_b32 v28, v80 offset:512
    """)
    for k in range(16):
        a(f"v_pk_add_f32 v[{48+2*k}:{49+2*k}], v[{48+2*k}:{49+2*k}], v[24:25] neg_lo:[0,1] neg_hi:[0,1]")
    a("s_waitcnt lgkmcnt(0)\n s_barrier")
    for i in range(4): a(f"ds_read_b128 v[{80+4*i}:{83+4*i}], v29 offset:{512+16*i}")
    for k in range(16): a(f"v_cvt_pk_bf16_f32 v{32+k}, v{48+2*k}, v{49+2*k}")
    for k in range(16):
        a(f"v_lshlrev_b32 v{48+2*k}, 16, v{32+k}")
        a(f"v_and_b32 v{49+2*k}, 0xffff0000, v{32+k}")
    a("s_waitcnt lgkmcnt(0)")
    for n in (4, 2, 1):
        for i in range(n):
            a(f"v_pk_add_f32 v[{80+2*i}:{81+2*i}], v[{80+2*i}:{81+2*i}], v[{80+2*(i+n)}:{81+2*(i+n)}]")
    a(f"""
    v_add_f32 v80, v80, v81
    v_mul_f32 v30, 0x3a800000, v80
    v_cvt_pk_bf16_f32 v30, v30, v30
    v_and_b32 v30, 0xffff0000, v30
    v_add_f32 v30, {EPS5:#x}, v30
    v_cvt_pk_bf16_f32 v30, v30, v30
    v_and_b32 v30, 0xffff0000, v30
    v_sqrt_f32 v30, v30
    s_add_u32 s92, s92, 1
    v_cvt_pk_bf16_f32 v30, v30, v30
    v_and_b32 v30, 0xffff0000, v30
    v_rcp_f32 v30, v30
    s_not_b32 s93, s92
    v_mov_b32 v31, v30
    """)
    for i in range(4):
        for d in range(4):
            k = 4*i + d
            a(f"v_pk_mul_f32 v[{48+2*k}:{49+2*k}], v[{48+2*k}:{49+2*k}], v[30:31]")
        for d in range(4):
            k = 4*i + d
            a(f"v_cvt_pk_bf16_f32 v{32+k}, v{48+2*k}, v{49+2*k}")
        a(f"buffer_store_dwordx4 v[{32+4*i}:{35+4*i}], v27, s[40:43], s{76+i} offen sc1")
    stamp("lnstore")
    srds = [24, 28, 28, 32, 32]; offs = [60, 61, 61, 61, 61]
    def dma(i): return f"buffer_load_dwordx4 v{2+i}, s[{srds[i]}:{srds[i]+3}], s{offs[i]} offen lds"
    DADV = "s_add_u32 s60, s60, s62\n s_add_u32 s61, s61, s63"
    def xload(u, tt):
        r = xfrag(u, tt)
        return f"buffer_load_dwordx4 a[{r}:{r+3}], v16, s[36:39], s64 offen offset:{tt*1024} sc1"
    TS = [71, 71, 72, 74]
    tcount = [0]
    def touch(pu, wv=None):
        tcount[0] += 1
        return f"s_cmp_eq_u32 s3, {pu if wv is None else wv}\n s_cbranch_scc0 {name}_tc{tcount[0]}\n buffer_load_dword v23, v17, s[{44+4*pu}:{47+4*pu}], s{TS[pu]} offen\n{name}_tc{tcount[0]}:"
    vm = []
    for i in range(5):
        a(f"s_add_u32 m0, s69, {i*1024}\n s_nop 0")
        a(dma(i)); vm.append(("d", 0))
    a(DADV)
    a("s_waitcnt vmcnt(5)\n s_barrier")
    flag_store(84, 18, f"{name}_sig0")
    stamp("lnsig")
    for st in range(1, npre):
        for i in range(5):
            a(f"s_add_u32 m0, s69, {st*SLOT + i*1024}\n s_nop 0")
            a(dma(i)); vm.append(("d", st))
        a(DADV)
    a(f"s_cmp_eq_u32 s3, 0\n s_cbranch_scc0 {name}_p0s")
    a(poll_load(20, 17, 85))
    a("s_waitcnt vmcnt(0)")
    a(poll_check(20, 17, 85, f"{name}_p0"))
    a.label(f"{name}_p0s")
    a(f"s_waitcnt vmcnt({5*(npre-1)})\n s_barrier")
    stamp("lnpoll")
    for st in range(nx):
        for tt in range(4): a(xload(st, tt)); vm.append(("x", st))
        a("s_add_u32 s64, s64, 4096")
    for pu in range(3):
        a(touch(pu, pu + 1))
        if pu: a(f"s_add_u32 s{TS[pu]}, s{TS[pu]}, {1<<20}")
    def trreads(c, bset):
        b = 10 + 3 * bset; r = wfrag(c)
        if c < 6:
            base = b + (c & 1); off = c * 32; step = 16 * 192
        else:
            base = b + 2; u = 1 if c >= 13 else 0; t = c - (13 if u else 6)
            off = 6144 + u * 7168 + t * 32; step = 16 * 224
        return [f"ds_read_b64_tr_b16 a[{r}:{r+1}], v{base} offset:{off}",
                f"ds_read_b64_tr_b16 a[{r+2}:{r+3}], v{base} offset:{off+step}"]
    for c in range(9):
        for ins in trreads(c, 0): a(ins)
    a(f"s_waitcnt vmcnt({4*(nx-1)}) lgkmcnt(8)")
    stamp("loop1")
    def X(u, k): return [(None, xload(u + k, tt), (lambda s, k=k: ("x", s + k)), ["s_add_u32 s64, s64, 4096"] if tt == 3 else []) for tt in range(4)]
    DA = ["s_add_u32 s60, s60, s62", "s_add_u32 s61, s61, s63"]
    def Dst(stage): return [(f"s_add_u32 m0, s69, {(stage % R)*SLOT + i*1024}", dma(i), (lambda s, st=stage: ("d", st)), DA if i == 4 else []) for i in range(5)]
    def Ddyn(): return [(f"s_add_u32 m0, s70, {i*1024}", dma(i), (lambda s: ("d", s + R - 1)), DA if i == 4 else []) for i in range(5)]
    def W2(q): return [(f"s_add_u32 m0, s88, {POS2[q] + i*1024}", f"buffer_load_dwordx4 v{18+i}, s[56:59], s75 offen lds", (lambda s, q=q: ("w", q)), [f"s_add_u32 s75, s75, {64*2048}"] if i == 3 else []) for i in range(4)]
    XRES = []
    for t2 in range(2):
        for nt in range(4):
            r = A_XR + 8 * t2 + 2 * nt
            XRES.append((None, f"buffer_load_dwordx2 a[{r}:{r+1}], v22, s[80:83], s{96+t2} offen offset:{nt*32}", lambda s: ("r", 0), []))
    VOFFY = f"""v_lshrrev_b32 v21, 4, v1
    v_bfe_u32 v19, v1, 1, 3
    v_xor_b32 v19, v19, v21
    s_lshl_b32 s84, s98, 2
    v_xor_b32 v19, s84, v19
    v_lshlrev_b32 v21, 11, v21
    v_and_b32 v20, 1, v1
    v_lshl_add_u32 v21, v20, 4, v21
    s_lshl_b32 s84, s3, 15
    s_lshl_b32 s85, s21, 8
    s_add_u32 s84, s84, s85
    v_add_u32 v21, s84, v21
    v_lshl_add_u32 v18, v19, 5, v21
    v_xor_b32 v19, 4, v19
    v_lshl_add_u32 v19, v19, 5, v21
    v_add_u32 v19, 8192, v19
    v_add_u32 v20, 16384, v18
    v_add_u32 v21, 16384, v19""".split("\n")
    def build_stage(u, before, after_b, do_touch=True, last=False, misc=()):
        bs = u & 1
        gaps = {}
        def put(c, g, ins, tag=None): gaps.setdefault((c, g), []).append((ins, tag))
        def load(p): return sum(len(i.split("\n")) for i, _ in gaps.get((p // 4, p % 4), []))
        for c in range(20):
            cn = c + 9
            if cn >= 20 and last: continue
            rd = trreads(cn, bs) if cn < 20 else trreads(cn - 20, bs ^ 1)
            put(c, 0, rd[0]); put(c, 1, rd[1])
        for c in (3, 7): put(c, 3, "s_waitcnt lgkmcnt(8)")
        if not last:
            for c in (11, 15, 19): put(c, 3, "s_waitcnt lgkmcnt(8)")
        else:
            put(11, 3, "s_waitcnt lgkmcnt(6)"); put(15, 3, "s_waitcnt lgkmcnt(0)")
        put(10, 2, "WAIT"); put(10, 3, "s_barrier")
        def seq(items, p0, p1):
            for cap in (1, 2, 3):
                free = [p for p in range(p0, p1) if load(p) < cap]
                if len(free) >= len(items): break
            else: raise AssertionError("no room")
            if cap > 1:
                e = [p for p in free if load(p) == 0]; o = [p for p in free if load(p) > 0]
                need = len(items) - len(e)
                free = sorted(e + [o[k * len(o) // need] for k in range(need)])
            n = len(items)
            for k, (ins, tag) in enumerate(items):
                p = free[k * len(free) // n]
                put(p // 4, p % 4, ins, tag)
        def flat(ops):
            out = []
            for pre_, ins, tag, post in ops:
                if pre_: out.append((pre_, None))
                out.append((ins, tag))
                out += [(x, None) for x in post]
            return out
        b4 = flat(before)
        oth = [(m, None) for m in misc]
        if not last:
            nb = 10 + 3 * (bs ^ 1)
            oth += [(f"v_add_u32 v{nb}, s67, v7", None), (f"v_add_u32 v{nb+1}, s67, v8", None), (f"v_add_u32 v{nb+2}, s67, v9", None),
                   ("s_add_u32 s70, s65, s69", None), ("s_mov_b32 s65, s66", None), ("s_mov_b32 s66, s67", None),
                   (f"s_add_u32 s67, s67, {SLOT}", None), (f"s_cmp_ge_u32 s67, {R*SLOT}\n s_cselect_b32 s67, 0, s67", None)]
        if do_touch:
            b4.append((touch(u), None))
            if u != 0: b4.append((f"s_add_u32 s{TS[u]}, s{TS[u]}, {1<<20}", None))
        mer = []
        for it in b4:
            mer.append(it)
            if it[1] and oth: mer.append(oth.pop(0))
        b4 = mer + oth
        seq(b4, 0, 42)
        af = flat(after_b)
        if do_touch and u == 2:
            af += [(f"s_cmp_ge_u32 s72, {QB}\n s_cselect_b32 s52, s8, s52", None), (f"s_cmp_ge_u32 s72, {QB}\n s_cselect_b32 s53, s89, s53", None),
                   (f"s_cmp_ge_u32 s72, {QB}\n s_cselect_b32 s54, {OB}, s54\n s_cselect_b32 s72, s73, s72", None)]
        if af: seq(af, 44, 79)
        return gaps
    def emit_stage(u, gaps, nwait, first=False, tail=None):
        for c in range(20):
            tts = [0, 1, 2, 3] if c % 2 == 0 else [3, 2, 1, 0]
            w = wfrag(c)
            for g, tt in enumerate(tts):
                x = xfrag(u, tt)
                A, B = (f"a[{w}:{w+3}]", f"a[{x}:{x+3}]")
                if 2 <= c < 6: A, B = B, A
                a(f"v_mfma_f32_16x16x32_bf16 {acc(c,tt)}, {A}, {B}, {'0' if first else acc(c,tt)}")
                for ins, tag in gaps.get((c, g), []):
                    a(f"s_waitcnt vmcnt({nwait})" if ins == "WAIT" else ins)
                if tail and c == 19 and g == 2: a(tail)
    def sim_stage(s, gaps):
        n = None
        for c in range(20):
            for g in range(4):
                for ins, tag in gaps.get((c, g), []):
                    if ins == "WAIT":
                        need = [t for t in (("d", s + 1), ("x", s + 1)) if t in vm]
                        n = len(vm) - 1 - max(i for i, t in enumerate(vm) if t in need) if need else 63
                    elif tag: vm.append(tag(s))
        return min(n, 63)
    CW = [(f"s_add_u32 s84, s88, {k*16384}\n s_min_u32 s84, s84, {name}_codeend-{name}_g1end-4096\n s_add_u32 s86, s76, s84\n s_addc_u32 s87, s77, 0",
           "global_load_dword v23, v17, s[86:87]", lambda s: ("c", 0), []) for k in range(3)]
    if npre == 2: f0b, f0a, f1b = Dst(2), Dst(3), Dst(4)
    elif npre == 3: f0b, f0a, f1b = Dst(3), Dst(4), []
    else: f0b, f0a, f1b = [], Dst(4), []
    if nx == 2: f0b, f0a = X(0, 2) + f0b, X(0, 3) + f0a
    else: f0b = X(0, 3) + f0b
    G_first = [build_stage(0, f0b, f0a),
               build_stage(1, X(1, 3) + f1b, Ddyn()),
               build_stage(2, X(2, 3), Ddyn()),
               build_stage(3, X(3, 3), Ddyn())]
    G_loop = [build_stage(u, X(u, 3), Ddyn()) for u in range(4)]
    G_last = [build_stage(0, X(0, 3), W2(0) + W2(1), do_touch=False, misc=[x.strip() for x in VOFFY]),
              build_stage(1, W2(2) + W2(3), W2(4), do_touch=False),
              build_stage(2, CW, W2(5), do_touch=False),
              build_stage(3, XRES, W2(6), do_touch=False, last=True)]
    n_first = [sim_stage(s, G_first[s]) for s in range(4)]
    n_loop = [63] * 4
    for s in range(4, 28): n_loop[s % 4] = min(n_loop[s % 4], sim_stage(s, G_loop[s % 4]))
    n_last = [sim_stage(28 + u, G_last[u]) for u in range(4)]
    for u in range(4):
        emit_stage(u, G_first[u], n_first[u], first=(u == 0))
        if it1: stamp(f"f{u}")
    a.raw(".p2align 6")
    a.label(f"{name}_loop1")
    for u in range(4): emit_stage(u, G_loop[u], n_loop[u], tail=("s_add_u32 s68, s68, 1" if u == 3 else None))
    a(f"s_cmp_lt_u32 s68, 6\n s_cbranch_scc1 {name}_loop1")
    a(f"""
    s_getpc_b64 s[76:77]
    {name}_pc:
    s_add_u32 s76, s76, {name}_g1end-{name}_pc
    s_addc_u32 s77, s77, 0
    """)
    if it1: stamp("rolled")
    for u in range(4): emit_stage(u, G_last[u], n_last[u])
    stamp("loop1end")
    info = (n_first, n_loop, n_last)

    a.label(f"{name}_g1end")
    a(f"""
    s_barrier
    s_mov_b32 s44, {LOG2E:#x}
    s_mov_b32 s45, {LOG2E:#x}
    s_mov_b32 s46, {NLOG2E:#x}
    s_mov_b32 s47, {NLOG2E:#x}
    s_mov_b32 s48, {EPS6:#x}
    s_mov_b32 s49, {EPS6:#x}
    v_mov_b32 v10, v18
    v_mov_b32 v11, v19
    v_mov_b32 v12, v20
    v_mov_b32 v13, v21
    v_mov_b32 v15, v22
    s_lshl_b32 s63, s11, 3
    s_lshl_b32 s52, s3, 1
    s_add_u32 s63, s63, s52
    s_mul_i32 s63, s63, {HF_TG2}
    s_add_u32 s63, s63, {HF_OFF}
    s_mul_i32 s52, s10, 7
    s_lshr_b32 s52, s52, 1
    s_lshl_b32 s52, s52, 11
    s_add_u32 s61, s63, s52
    s_and_b32 s62, s10, 1
    v_add_u32 v17, 8, v16
    """)
    def h_tile(tt):
        hb = accr(6, tt)[1]
        for i in range(7):
            fg, g = accr(6 + i, tt); assert fg == "v"
            fu, u = accr(13 + i, tt)
            a(f"v_pk_mul_f32 v[18:19], v[{g}:{g+1}], s[46:47]")
            a(f"v_pk_mul_f32 v[20:21], v[{g+2}:{g+3}], s[46:47]")
            for k in range(4): a(f"v_exp_f32 v{18+k}, v{18+k}")
            if fu == "a":
                for k in range(4): a(f"v_accvgpr_read_b32 v{6+k}, a{u+k}")
                u = 6
            else: a("s_nop 0")
            a(f"v_pk_add_f32 v[18:19], v[18:19], 1.0 op_sel_hi:[1,0]")
            a(f"v_pk_add_f32 v[20:21], v[20:21], 1.0 op_sel_hi:[1,0]")
            for k in range(4): a(f"v_rcp_f32 v{18+k}, v{18+k}")
            a(f"v_pk_mul_f32 v[{g}:{g+1}], v[{g}:{g+1}], v[{u}:{u+1}]")
            a(f"v_pk_mul_f32 v[{g+2}:{g+3}], v[{g+2}:{g+3}], v[{u+2}:{u+3}]")
            a(f"v_pk_mul_f32 v[{g}:{g+1}], v[{g}:{g+1}], v[18:19]")
            a(f"v_pk_mul_f32 v[{g+2}:{g+3}], v[{g+2}:{g+3}], v[20:21]")
            a(f"v_cvt_pk_bf16_f32 v{hb+2*i}, v{g}, v{g+1}")
            a(f"v_cvt_pk_bf16_f32 v{hb+2*i+1}, v{g+2}, v{g+3}")
        off = (tt >> 1) * HF_TG2 + (tt & 1) * 1024
        a(f"s_add_u32 s52, s61, {off}")
        a(f"s_add_u32 s53, s61, {off + 4096}")
        a(f"s_cmp_eq_u32 s62, 0")
        a(f"s_cbranch_scc0 {name}_odd{tt}")
        a(f"buffer_store_dwordx4 v[{hb}:{hb+3}], v16, s[40:43], s52 offen sc1")
        a(f"buffer_store_dwordx4 v[{hb+4}:{hb+7}], v16, s[40:43], s52 offen offset:2048 sc1")
        a(f"buffer_store_dwordx4 v[{hb+8}:{hb+11}], v16, s[40:43], s53 offen sc1")
        a(f"buffer_store_dwordx2 v[{hb+12}:{hb+13}], v16, s[40:43], s53 offen offset:2048 sc1")
        a(f"s_branch {name}_join{tt}")
        a.label(f"{name}_odd{tt}")
        a(f"buffer_store_dwordx2 v[{hb}:{hb+1}], v17, s[40:43], s52 offen sc1")
        a(f"buffer_store_dwordx4 v[{hb+2}:{hb+5}], v16, s[40:43], s52 offen offset:2048 sc1")
        a(f"buffer_store_dwordx4 v[{hb+6}:{hb+9}], v16, s[40:43], s53 offen sc1")
        a(f"buffer_store_dwordx4 v[{hb+10}:{hb+13}], v16, s[40:43], s53 offen offset:2048 sc1")
        a.label(f"{name}_join{tt}")
    for tt in range(4): h_tile(tt)
    stamp("hst")
    def phi_tile(ct, tt):
        f, r = accr(ct, tt); assert f == "v"
        a(f"v_pk_mul_f32 v[18:19], v[{r}:{r+1}], s[44:45]")
        a(f"v_pk_mul_f32 v[20:21], v[{r+2}:{r+3}], s[44:45]")
        for k in range(4): a(f"v_exp_f32_e64 v{18+k}, v{18+k} clamp")
        for k in range(4): a(f"v_max_f32 v{r+k}, 0, v{r+k}")
        a(f"v_pk_add_f32 v[{r}:{r+1}], v[{r}:{r+1}], v[18:19]")
        a(f"v_pk_add_f32 v[{r+2}:{r+3}], v[{r+2}:{r+3}], v[20:21]")
        a(f"v_pk_add_f32 v[{r}:{r+1}], v[{r}:{r+1}], s[48:49]")
        a(f"v_pk_add_f32 v[{r+2}:{r+3}], v[{r+2}:{r+3}], s[48:49]")
    def pack_pair(r0, r1):
        a(f"v_cvt_pk_bf16_f32 v{r0}, v{r0}, v{r0+1}")
        a(f"v_cvt_pk_bf16_f32 v{r0+1}, v{r0+2}, v{r0+3}")
        a(f"v_cvt_pk_bf16_f32 v{r0+2}, v{r1}, v{r1+1}")
        a(f"v_cvt_pk_bf16_f32 v{r0+3}, v{r1+2}, v{r1+3}")
    for k in range(4): a(f"v_mov_b32 v{2+k}, 0x3f803f80")
    for ca in (2, 3):
        for tt in range(4): phi_tile(ca, tt)
    for ca in (2, 3, 4, 5):
        for p in range(2): pack_pair(accr(ca, 2*p)[1], accr(ca, 2*p+1)[1])
    free = [accr(ca, tt)[1] for ca in (2, 3, 4, 5) for tt in (1, 3)]
    keys = [(0,0),(0,1),(1,0),(1,1),(0,'z'),(1,'z')]
    D = {k: free[i] for i, k in enumerate(keys)}
    a("s_nop 1")
    for p in range(2):
        for aa in range(2):
            pk = accr(2 + aa, 2*p)[1]
            for bb in (0, 1, 'z'):
                vb = accr(4 + bb, 2*p)[1] if bb != 'z' else 2
                d = D[(aa, bb)]
                c = "0" if p == 0 else f"v[{d}:{d+3}]"
                a(f"v_mfma_f32_16x16x32_bf16 v[{d}:{d+3}], v[{pk}:{pk+3}], v[{vb}:{vb+3}], {c}")
    a(f"""
    v_add_u32 v17, s88, v16                ; w*4096 + lane*16
    v_and_b32 v22, 48, v1                  ; Q*16
    s_lshl_b32 s52, s3, 7
    v_add_u32 v14, s52, v22                ; w*128 + Q*16
    s_lshl_b32 s70, s11, 5
    s_add_u32 s70, s70, s10
    s_lshl_b32 s70, s70, 7
    s_add_u32 s84, s70, {FL_H}
    s_add_u32 s85, s70, {FL_KV}
    s_add_u32 s86, s70, {FL_O}
    s_lshr_b32 s52, s20, 1
    s_lshl_b32 s52, s52, 12
    s_add_u32 s73, s52, {FL_O}
    s_lshl_b32 s53, s98, 11
    s_add_u32 s71, s52, s53
    s_add_u32 s71, s71, {FL_H}
    s_lshl_b32 s72, s10, 7
    s_add_u32 s72, s72, {FL_KV}
    """)
    for ti, key in enumerate(keys):
        d = D[key]
        if ti < 4: a(f"ds_write_b128 v17, v[{d}:{d+3}] offset:{KVSCR + ti*1024}")
        else: a(f"ds_write_b128 v14, v[{d}:{d+3}] offset:{KVSCR + 16384 + (ti-4)*64}")
    a(f"s_waitcnt vmcnt(0) lgkmcnt(0)\n s_barrier")
    flag_store(84, 18, f"{name}_sig1")
    a(f"""
    v_and_b32 v14, 15, v1
    v_lshlrev_b32 v14, 7, v14
    {poll_load(2, 14, 71)}
    """)
    stamp("hsig")
    t0 = accr(2, 0)[1]
    a(f"""
    s_lshl_b32 s52, s3, 10
    v_add_u32 v17, s52, v16
    s_and_b32 s54, s3, 1
    s_lshl_b32 s54, s54, 6
    v_add_u32 v18, s54, v22
    """)
    for w in range(4): a(f"ds_read_b128 v[{t0+4*w}:{t0+4*w+3}], v17 offset:{KVSCR + w*4096}")
    for w in range(4): a(f"ds_read_b128 v[{t0+16+4*w}:{t0+16+4*w+3}], v18 offset:{KVSCR + 16384 + w*128}")
    a(f"""
    s_lshl_b32 s60, s10, 15
    s_add_u32 s60, s60, s52
    s_add_u32 s60, s60, {KV_OFF}
    s_lshl_b32 s87, s10, 10
    s_add_u32 s87, s87, {ZP_OFF}           ; z base
    s_lshl_b32 s52, s11, 12
    s_add_u32 s52, s52, s60
    s_lshl_b32 s53, s11, 7
    s_add_u32 s53, s53, s87
    s_waitcnt lgkmcnt(0)
    """)
    for base in (t0, t0 + 16):
        a(f"v_pk_add_f32 v[{base}:{base+1}], v[{base}:{base+1}], v[{base+4}:{base+5}]")
        a(f"v_pk_add_f32 v[{base+2}:{base+3}], v[{base+2}:{base+3}], v[{base+6}:{base+7}]")
        a(f"v_pk_add_f32 v[{base+8}:{base+9}], v[{base+8}:{base+9}], v[{base+12}:{base+13}]")
        a(f"v_pk_add_f32 v[{base+10}:{base+11}], v[{base+10}:{base+11}], v[{base+14}:{base+15}]")
        a(f"v_pk_add_f32 v[{base}:{base+1}], v[{base}:{base+1}], v[{base+8}:{base+9}]")
        a(f"v_pk_add_f32 v[{base+2}:{base+3}], v[{base+2}:{base+3}], v[{base+10}:{base+11}]")
    a(f"buffer_store_dwordx4 v[{t0}:{t0+3}], v16, s[40:43], s52 offen sc1")
    a(f"buffer_store_dwordx4 v[{t0+16}:{t0+19}], v18, s[40:43], s53 offen sc1")
    V_BY, V_BS, V_Y, V_S, V_X, V_E = 88, 112, 128, 192, 224, 240
    A_W2 = 8 * HR
    a(f"""
    v_lshrrev_b32 v18, 2, v1
    v_and_b32 v19, 3, v1
    v_lshlrev_b32 v19, 3, v19
    v_lshl_add_u32 v20, v18, 8, v19
    v_and_b32 v21, 7, v18
    """)
    for nt in range(8):
        a(f"v_xor_b32 v4, {nt}, v21")
        a(f"v_lshl_add_u32 v{V_BY+nt}, v4, 5, v20")
        a(f"v_add_u32 v{V_BY+8+nt}, 0x10000, v{V_BY+nt}")
        a(f"v_add_u32 v{V_BY+16+nt}, 0x20000, v{V_BY+nt}")
    a(f"""
    s_lshl_b32 s52, s20, 2
    s_add_u32 s52, s52, s3
    s_mul_i32 s52, s52, {HF_TG2}
    s_add_u32 s52, s52, {HF_OFF}
    s_mul_i32 s64, s98, {56*2048}
    """)
    srd_off(a, 32, "s22", "s23", "s52", HF_TG2)
    stamp("g2set")
    a(f"s_waitcnt vmcnt(0)")
    a(f"s_cmp_eq_u32 s3, 0\n s_cbranch_scc0 {name}_p1s")
    a(poll_check(2, 14, 71, f"{name}_p1"))
    a.label(f"{name}_p1s")
    a("s_barrier")
    flag_store(85, 4, f"{name}_sig2")
    stamp("hpoll")
    late = f"""v_lshrrev_b32 v84, 2, v1
    v_and_b32 v85, 3, v1
    v_lshlrev_b32 v85, 3, v85
    v_lshl_add_u32 v86, v84, 7, v85
    v_bfe_u32 v87, v1, 3, 2""".split("\n")
    for nt in range(4):
        late += [f"v_xor_b32 v84, {nt}, v87", f"v_lshl_add_u32 v{V_BS+nt}, v84, 5, v86",
                 f"v_add_u32 v{V_BS+4+nt}, 0x10000, v{V_BS+nt}", f"v_add_u32 v{V_BS+8+nt}, 0x20000, v{V_BS+nt}"]
    late += f"""v_lshrrev_b32 v84, 3, v1
    v_bfe_u32 v85, v1, 1, 2
    v_bfe_u32 v86, v1, 4, 2
    v_xor_b32 v85, v85, v86
    v_lshlrev_b32 v6, 11, v84
    v_lshl_add_u32 v6, v85, 5, v6
    v_and_b32 v85, 1, v1
    v_lshl_add_u32 v6, v85, 4, v6
    s_lshl_b32 s54, s21, 8
    s_lshl_b32 s53, s98, 7
    s_add_u32 s54, s54, s53
    s_lshl_b32 s52, s3, 16
    s_add_u32 s52, s52, s54
    v_add_u32 v6, s52, v6
    v_add_u32 v7, 16384, v6
    v_add_u32 v8, 32768, v6
    v_add_u32 v9, 49152, v6
    s_lshl_b32 s65, s10, 11
    s_add_u32 s65, s65, s63
    s_add_u32 s65, s65, {112*2048}
    s_add_u32 s66, s65, {HF_TG2}
    s_lshl_b32 s74, s2, 2
    s_add_u32 s74, s74, s3
    s_xor_b32 s69, s74, 4
    s_lshl_b32 s67, s74, 13
    s_add_u32 s67, s67, {YX_OFF}
    s_lshl_b32 s68, s69, 13
    s_add_u32 s68, s68, {YX_OFF}
    s_lshl_b32 s74, s74, 7
    s_add_u32 s74, s74, {FL_Y}
    s_lshl_b32 s69, s69, 7
    s_add_u32 s69, s69, {FL_Y}
    s_mov_b32 s28, s8
    s_mov_b32 s29, s89
    s_mov_b32 s30, {OB}
    s_mov_b32 s31, 0x00020000
    s_mov_b32 s24, s18
    s_and_b32 s25, s19, 0xffff
    s_mov_b32 s26, {XB}
    s_mov_b32 s27, 0x00020000""".split("\n")
    NY, NS = 56, 32
    frags = [(t, nt) for t in range(NY) for nt in range(8)] + [(t, nt) for t in range(NY, NY + NS) for nt in range(4)]
    NF = len(frags)
    def slot_of(t): return t >> 1 if t < NY else 28 + ((t - NY) >> 2)
    def rd(f):
        t, nt = frags[f]; q = slot_of(t); r = A_W2 + 4 * (f % 16)
        o = POS2[q % R2]
        if t < NY: o += (t & 1) * 8192; st = 4096; b = V_BY + nt; bs_ = 8
        else: o += ((t - NY) & 3) * 4096; st = 2048; b = V_BS + nt; bs_ = 4
        out = []
        for h, oo in enumerate((o, o + st)):
            out.append(f"ds_read_b64_tr_b16 a[{r+2*h}:{r+2*h+1}], v{b + bs_*(oo >> 16)} offset:{oo & 0xffff}")
        return out
    vm = []
    def hload(t, t2):
        r = 8 * (t % HR) + 4 * t2
        return f"buffer_load_dwordx4 a[{r}:{r+3}], v16, s[32:35], s64 offen offset:{(t&1)*2048 + t2*1024} sc1"
    def hadv(t):
        if t == NY - 1: return [f"s_mov_b32 s64, {112*2048}"]
        return ["s_add_u32 s64, s64, 4096"] if t & 1 else []
    HP = pos.get("hp", 5)
    for t in range(HP):
        for t2 in range(2): a(hload(t, t2)); vm.append(("h", t))
        for ins in hadv(t): a(ins)
        if t == 1:
            for f in range(8):
                for ins in rd(f): a(ins)
    fl = [[[], []] for _ in range(NF)]
    pre = [[] for _ in range(NF + 1)]
    first_f = {}
    for f, (t, nt) in enumerate(frags): first_f.setdefault(t, f)
    Fq = {}
    for f, (t, nt) in enumerate(frags): Fq.setdefault(slot_of(t), f)
    tn = HP
    for t in range(NY + NS):
        k = 0
        while tn < min(t + HR, NY + NS) and k < (3 if t < NY else 1):
            f0 = first_f[t] + 2 * k
            fl[f0][0].append((hload(tn, 0), ("h", tn)))
            fl[f0][1].append((hload(tn, 1), ("h", tn)))
            for ins in hadv(tn): fl[f0 + 1][0].append((ins, None))
            tn += 1; k += 1
    assert tn == NY + NS
    bars = sorted(Fq[q] - 8 for q in range(1, 36))
    for q in range(1, 36):
        fb = Fq[q] - 8
        qn = q - 2 + R2
        nxt = [x for x in bars if x > fb]
        fe = nxt[0] if nxt else NF
        tneed = sorted({frags[f][0] for f in range(fb, fe)})
        pre[fb].append(("bar", [("d", q)] + [("h", t) for t in tneed]))
        if qn < 36:
            for i in range(4):
                fpos = fb + 3 + 3 * i
                vo = (10 + i) if qn < 28 else (6 + i)
                sr = 56 if qn < 28 else 28
                if i == 0 and qn == 28: fl[fpos - 1][1].append(("s_mov_b32 s75, 0", None))
                fl[fpos][0].append((f"s_add_u32 m0, s88, {POS2[qn % R2] + i*1024}", None))
                fl[fpos][1].append((f"buffer_load_dwordx4 v{vo}, s[{sr}:{sr+3}], s75 offen lds", ("d", qn)))
                if i == 3: fl[fpos + 1][0].append((f"s_add_u32 s75, s75, {(64 if qn < 28 else 128)*2048}", None))
    ph = []
    for tt in range(4):
        for ct in (0, 1):
            r = accr(ct, tt)[1]
            for k in range(4): ph.append(f"v_mul_f32 v{80+k}, s44, v{r+k}")
            for k in range(4): ph.append(f"v_exp_f32_e64 v{80+k}, v{80+k} clamp")
            for k in range(4): ph.append(f"v_max_f32 v{r+k}, 0, v{r+k}")
            for k in range(4): ph.append(f"v_add_f32 v{r+k}, v{r+k}, v{80+k}")
            for k in range(4): ph.append(f"v_add_f32 v{r+k}, s48, v{r+k}")
        r0, r1 = accr(0, tt)[1], accr(1, tt)[1]
        ph += [f"v_cvt_pk_bf16_f32 v{r0}, v{r0}, v{r0+1}", f"v_cvt_pk_bf16_f32 v{r0+1}, v{r0+2}, v{r0+3}",
               f"v_cvt_pk_bf16_f32 v{r0+2}, v{r1}, v{r1+1}", f"v_cvt_pk_bf16_f32 v{r0+3}, v{r1+2}, v{r1+3}"]
    early = [l for l in late if "s65" in l or "s66" in l]
    late = [l for l in late if l not in early]
    nq = len(early) + len(ph)
    ph = early + ph + late
    f = 2; g = 0; PH_END = None
    while ph:
        if len(fl[f][g]) < 2 and not any(tg for _, tg in fl[f][g]):
            fl[f][g].append((ph.pop(0).strip(), None)); nq -= 1
            if nq == 0: PH_END = f
        g ^= 1
        if g == 0: f += 1
    LATE_END = f
    T = V_S; O = T + 16
    def at(t, item): pre[first_f[t] + 4 if t < NY else first_f[t] + 2].append(item)
    def dripv(t, items, step):
        f = (first_f[t] + 4 if t < NY else first_f[t] + 2)
        for it in items:
            fl[f][1].append(it if isinstance(it, tuple) else (it, None))
            if isinstance(it, tuple): f += step
    P = dict(kvpoll=3, kvchk=8, sum=15, oc=18, osig=25, opoll=35, ochk=41, ysend=57, yflag=68, ypoll=75, ychk=80)
    P.update(pos)
    ZR = T + 32
    at(P["kvpoll"], ("code", ["v_and_b32 v14, 7, v1", "v_lshlrev_b32 v14, 12, v14", (poll_load(2, 14, 72), "pk"),
                              "v_and_b32 v18, 15, v1", "v_and_b32 v19, 7, v1", "v_lshrrev_b32 v18, 3, v18",
                              "v_lshl_add_u32 v19, v19, 7, v22", "v_lshl_add_u32 v19, v18, 6, v19"]))
    at(P["kvchk"], ("wait", ["pk"])); at(P["kvchk"], ("code", [poll_check(2, 14, 72, f"{name}_ck1")]))
    items = [(f"buffer_load_dwordx4 v[{ZR}:{ZR+3}], v19, s[40:43], s87 offen sc1", "kv")]
    for p in range(8):
        if p: items.append("s_add_u32 s60, s60, 4096")
        items.append((f"buffer_load_dwordx4 v[{T+4*p}:{T+4*p+3}], v16, s[40:43], s60 offen sc1", "kv"))
    dripv(P["kvchk"], items, 3)
    blk = []
    for n in (4, 2, 1):
        for i in range(n):
            for hh in range(2):
                d = T + 4 * i + 2 * hh; s2_ = T + 4 * (i + n) + 2 * hh
                blk.append(f"v_pk_add_f32 v[{d}:{d+1}], v[{d}:{d+1}], v[{s2_}:{s2_+1}]")
    blk.append(f"v_cvt_pk_bf16_f32 v{T}, v{T}, v{T+1}")
    blk.append(f"v_cvt_pk_bf16_f32 v{T+1}, v{T+2}, v{T+3}")
    blk.append(f"""s_and_b32 s76, s3, 1
    s_lshr_b32 s77, s3, 1
    s_lshl_b32 s76, s76, 10
    s_lshl_b32 s77, s77, 3
    s_add_u32 s76, s76, s77
    s_add_u32 s76, s76, {SCR}
    v_add_u32 v18, s76, v16
    ds_write_b64 v18, v[{T}:{T+1}]
    v_add_u32 v18, {SCR}, v16""")
    for ctl in ("quad_perm:[1,0,3,2]", "quad_perm:[2,3,0,1]", "row_half_mirror"):
        for k in range(4): blk.append(f"v_add_f32_dpp v{ZR+k}, v{ZR+k}, v{ZR+k} {ctl} row_mask:0xf bank_mask:0xf")
    blk.append(f"v_cvt_pk_bf16_f32 v{ZR}, v{ZR}, v{ZR+1}")
    blk.append(f"v_cvt_pk_bf16_f32 v{ZR+1}, v{ZR+2}, v{ZR+3}")
    ZF = T + 8
    blk += [f"v_mov_b32 v{ZF}, v{ZR}", f"v_mov_b32 v{ZF+1}, v{ZR+1}", f"v_mov_b32 v{ZF+2}, v{ZR}", f"v_mov_b32 v{ZF+3}, v{ZR+1}", "s_nop 1"]
    blk += [f"v_mov_b32_dpp v{ZF}, v{ZR} row_ror:8 row_mask:0xf bank_mask:0xc", f"v_mov_b32_dpp v{ZF+1}, v{ZR+1} row_ror:8 row_mask:0xf bank_mask:0xc",
            f"v_mov_b32_dpp v{ZF+2}, v{ZR} row_ror:8 row_mask:0xf bank_mask:0x3", f"v_mov_b32_dpp v{ZF+3}, v{ZR+1} row_ror:8 row_mask:0xf bank_mask:0x3"]
    blk.append("s_waitcnt lgkmcnt(0)")
    at(P["sum"], ("wait", ["kv"])); at(P["sum"], ("code", blk))
    blk = [f"ds_read_b128 v[{T+4*i}:{T+4*i+3}], v18 offset:{i*1024}" for i in range(2)] + ["s_waitcnt lgkmcnt(0)"]
    for i in range(4):
        pq = accr(0, i)[1]
        for f in range(3):
            d = O + 12 * i + 4 * f
            blk.append(f"v_mfma_f32_16x16x32_bf16 v[{d}:{d+3}], v[{T+4*f}:{T+4*f+3}], v[{pq}:{pq+3}], 0")
    at(P["oc"], ("code", blk))
    assert first_f[P["oc"]] > PH_END, (PH_END, LATE_END)
    assert P["oc"] >= P["sum"] + 2
    assert LATE_END < Fq[22] - 8
    blk = []; items = []
    for i in range(4):
        d = O + 12 * i
        blk += [f"v_add_f32 v{d+8}, {EPS6:#x}, v{d+8}", f"v_rcp_f32 v{d+8}, v{d+8}", "s_nop 0", f"v_mov_b32 v{d+9}, v{d+8}"]
        for q in range(4): blk.append(f"v_pk_mul_f32 v[{d+2*q}:{d+2*q+1}], v[{d+2*q}:{d+2*q+1}], v[{d+8}:{d+9}]")
        for q in range(4): blk.append(f"v_cvt_pk_bf16_f32 v{d+q}, v{d+2*q}, v{d+2*q+1}")
        items.append((f"buffer_store_dwordx4 v[{d}:{d+3}], v16, s[40:43], s{65 + (i>>1)} offen offset:{(i&1)*1024} sc1", "os"))
    at(P["oc"] + 1, ("code", blk))
    dripv(P["oc"] + 1, items, 3)
    at(P["osig"], ("wait", ["os"]))
    at(P["osig"] + 2, ("flag0", (86, f"{name}_sig3")))
    at(P["opoll"], ("code", ["v_and_b32 v14, 31, v1", "v_lshlrev_b32 v14, 7, v14", (poll_load(2, 14, 73), "po")]))
    at(P["ochk"], ("wait", ["po"])); at(P["ochk"], ("code", [poll_check(2, 14, 73, f"{name}_ck2")]))
    assert P["ochk"] < NY - (HR - 1)
    items = []
    for i in range(8):
        r = V_Y + 32 + 4 * i
        if i == 4: items.append("s_add_u32 s67, s67, 4096")
        items.append((f"buffer_store_dwordx4 v[{r}:{r+3}], v16, s[40:43], s67 offen offset:{(i&3)*1024} sc1", "ys"))
    dripv(P["ysend"], items, 2)
    at(P["yflag"], ("wait", ["ys"])); at(P["yflag"], ("flagw", 74))
    at(P["ypoll"], ("code", ["v_mov_b32 v14, 0", (poll_load(2, 14, 69), "py")]))
    at(P["ychk"], ("wait", ["py"])); at(P["ychk"], ("code", [poll_check(2, 14, 69, f"{name}_ck3")]))
    items = []
    for i in range(8):
        r = V_Y + 32 + 4 * i
        if i == 4: items.append("s_add_u32 s68, s68, 4096")
        items.append((f"buffer_load_dwordx4 v[{r}:{r+3}], v16, s[40:43], s68 offen offset:{(i&3)*1024} sc1", "yr"))
    dripv(P["ychk"], items, 1)
    done = [-1]
    def vmwait(tags):
        idx = [i for i, t in enumerate(vm) if t in tags]
        for t in tags:
            if t[0] == "h": assert vm.count(t) == 2, t
        if not idx or max(idx) <= done[0]: return None
        done[0] = max(idx)
        n = len(vm) - 1 - max(idx)
        assert n <= 63
        return n
    n = vmwait([("h", 0)])
    a(f"s_waitcnt vmcnt({n})")
    stamp("loop2")
    for f, (t, nt) in enumerate(frags):
        waited = False
        for kind, arg in pre[f]:
            if kind == "bar":
                n = vmwait(arg)
                a((f"s_waitcnt vmcnt({n}) lgkmcnt(12)" if n is not None else "s_waitcnt lgkmcnt(12)") + "\n s_barrier")
                waited = True
            elif kind == "wait":
                n = vmwait(arg)
                if n is not None: a(f"s_waitcnt vmcnt({n})")
            elif kind == "code":
                for it in arg:
                    if isinstance(it, tuple): a(it[0]); vm.append(it[1])
                    else: a(it)
            elif kind == "flag0": flag_store(arg[0], 4, arg[1])
            elif kind == "flagw": flag_store(arg, 4, None, wave0=False); vm.append("fw")
        if f % 2 == 0 and not waited:
            a("s_waitcnt lgkmcnt(12)" if f + 8 < NF else f"s_waitcnt lgkmcnt({max(0, 2 * (NF - f - 2))})")
        if t == NY and nt == 0: stamp("yend")
        if t in fine and nt == 0: stamp(f"t{t}")
        r = rd(f + 8) if f + 8 < NF else [None, None]
        w = A_W2 + 4 * (f % 16)
        for g, t2 in enumerate((0, 1) if f % 2 == 0 else (1, 0)):
            hh = 8 * (t % HR) + 4 * t2
            d = (V_Y if t < NY else V_S) + 8 * nt + 4 * t2
            cc = "0" if t in (0, NY) else f"v[{d}:{d+3}]"
            a(f"v_mfma_f32_16x16x32_bf16 v[{d}:{d+3}], a[{w}:{w+3}], a[{hh}:{hh+3}], {cc}")
            if r[g]: a(r[g])
            for ins, tag in fl[f][g]:
                a(ins)
                if tag: vm.append(tag)
    stamp("loop2end")
    a("s_waitcnt vmcnt(0)")
    def rnd(r):
        if not mimic: return
        a(f"v_cvt_pk_bf16_f32 v{r+1}, v{r}, v{r+1}")
        a(f"v_lshlrev_b32 v{r}, 16, v{r+1}")
        a(f"v_and_b32 v{r+1}, 0xffff0000, v{r+1}")
    for t2 in range(2):
        for nt in range(4):
            s_ = V_S + 8 * nt + 4 * t2; y = V_Y + 8 * nt + 4 * t2; xr = V_X + 8 * t2 + 2 * nt
            e = V_E; e2 = V_E + 4
            for p in range(2): a(f"v_accvgpr_read_b32 v{xr+p}, a{A_XR + 8*t2 + 2*nt + p}")
            for p in range(2): a(f"v_pk_add_f32 v[{y+2*p}:{y+2*p+1}], v[{y+2*p}:{y+2*p+1}], v[{y+32+2*p}:{y+32+2*p+1}]")
            for p in range(2): rnd(y + 2*p)
            for p in range(2): a(f"v_pk_mul_f32 v[{e+2*p}:{e+2*p+1}], v[{y+2*p}:{y+2*p+1}], s[46:47]")
            for k in range(4): a(f"v_exp_f32 v{e+k}, v{e+k}")
            for p in range(2):
                a(f"v_lshlrev_b32 v{e2+2*p}, 16, v{xr+p}")
                a(f"v_and_b32 v{e2+2*p+1}, 0xffff0000, v{xr+p}")
            for p in range(2): a(f"v_pk_add_f32 v[{e+2*p}:{e+2*p+1}], v[{e+2*p}:{e+2*p+1}], 1.0 op_sel_hi:[1,0]")
            for k in range(4): a(f"v_rcp_f32 v{e+k}, v{e+k}")
            for p in range(2): a(f"v_pk_mul_f32 v[{y+2*p}:{y+2*p+1}], v[{y+2*p}:{y+2*p+1}], v[{s_+2*p}:{s_+2*p+1}]")
            for p in range(2): a(f"v_pk_fma_f32 v[{y+2*p}:{y+2*p+1}], v[{y+2*p}:{y+2*p+1}], v[{e+2*p}:{e+2*p+1}], v[{e2+2*p}:{e2+2*p+1}]")
            for p in range(2): a(f"v_cvt_pk_bf16_f32 v{xr+p}, v{y+2*p}, v{y+2*p+1}")
            a(f"buffer_store_dwordx2 v[{xr}:{xr+1}], v15, s[24:27], s{96+t2} offen offset:{nt*32}")
    a(f"""
    s_add_u32 s76, s2, s3
    s_cmp_eq_u32 s76, 0
    s_cbranch_scc0 {name}_noep
    s_mov_b32 s76, {EPOCH}
    v_mov_b32 v4, s92
    s_mov_b64 exec, 1
    buffer_store_dword v4, v16, s[40:43], s76 offen
    s_mov_b64 exec, -1
    """)
    a.label(f"{name}_noep")
    if stamps:
        a("s_waitcnt vmcnt(0)")
        stamp("end")
        a(f"""
        v_lshlrev_b32 v12, 2, v1
        s_lshl_b32 s76, s2, 2
        s_add_u32 s76, s76, s3
        s_lshl_b32 s76, s76, 8
        s_add_u32 s76, s76, {ST_OFF}
        buffer_store_dword v0, v12, s[40:43], s76 offen
        """)
    a.label(f"{name}_end")
    a("s_endpgm")
    a.label(f"{name}_codeend")
    return a.text(), 256 + A_END + 16, 102, 256, (info, (PH_END, LATE_END), stamp_names)

def build(**kw):
    txt, nv, ns, ac, info = gen(**kw)
    s = HEADER + f"; @launch grid=(256,1,1) block=(256,1,1) lds={LDS_BYTES}\n"
    s += '.amdgcn_target "amdgcn-amd-amdhsa--gfx950"\n.text\n' + kernel_begin(KN) + txt
    s += '.section .rodata,"a"\n.p2align 6\n' + kernel_desc(KN, nv, ns, ac)
    return s

if __name__ == "__main__":
    print(gen()[4])
    open("f_stamps.s", "w").write(build(stamps=True))
    open("f.s", "w").write(build())
```
